```python
import torch

def _softmax(x, axis=-1):
    return torch.softmax(x, dim=axis)
def _gelu(x):
    return torch.nn.functional.gelu(x, approximate="tanh")
def _silu(x):
    return torch.nn.functional.silu(x)
def _sigmoid(x):
    return torch.sigmoid(x)
def _layernorm(x, axis=-1, eps=1e-5):
    m = x.mean(dim=axis, keepdim=True)
    v = x.var(dim=axis, keepdim=True, unbiased=False)
    return (x - m) / torch.sqrt(v + eps)
def _scatter_add(tgt, idx, src, axis=0):
    return tgt.clone().index_add_(axis, idx, src)
def _segment_sum(src, seg, n):
    out = torch.zeros((n,) + src.shape[1:], dtype=src.dtype)
    return out.index_add_(0, seg, src)
def _pad(x, pw):
    flat = tuple(v for pair in reversed(pw) for v in pair)
    return torch.nn.functional.pad(x, flat)

kernel_name = 'sequential_preLN__sliding_block_cached__dense_activation_gelu__decode'

def setup_inputs():

    _w = (lambda a: (lambda t: t.to(torch.bfloat16) if t.is_floating_point() else t)(torch.as_tensor(a)))
    def _A_setup():
        B, Sq, D = 2, 1, 512
        Hq, Hkv, Sk, Dh = 32, 8, 8192, 128
        assert Hq % Hkv == 0, (Hq, Hkv)
        return {
            "x": _w((lambda *s: torch.randn(*s, dtype=torch.bfloat16) * 0.05)(B, Sq, D)),
            "k_cache": _w((lambda *s: torch.randn(*s, dtype=torch.bfloat16) * 3.2)(B, Hkv, Sk, Dh)),
            "v_cache": _w((lambda *s: torch.randn(*s, dtype=torch.bfloat16) * 0.8)(B, Hkv, Sk, Dh)),
            "wq": _w((lambda *s: torch.randn(*s, dtype=torch.bfloat16) * 3.2)(D, Hq * Dh) * (D ** -0.5)),
            "wo": _w((lambda *s: torch.randn(*s, dtype=torch.bfloat16) * 0.8)(Hq * Dh, D) * ((Hq * Dh) ** -0.5)),
        }
    _A_in = _A_setup()

    def _B_setup():
        B, S, D, F = 2, 1, 512, 1792
        return {
            "x": _w((lambda *s: torch.randn(*s, dtype=torch.bfloat16) * 0.05)(B, S, D)),
            "w1": _w((lambda *s: torch.randn(*s, dtype=torch.bfloat16) * 3.2)(D, F) * (D ** -0.5)),
            "b1": _w((lambda *s: torch.randn(*s, dtype=torch.bfloat16) * 3.2)(F) * 0.01),
            "w2": _w((lambda *s: torch.randn(*s, dtype=torch.bfloat16) * 0.4)(F, D) * (F ** -0.5)),
            "b2": _w((lambda *s: torch.randn(*s, dtype=torch.bfloat16) * 0.4)(D) * 0.01),
        }
    _B_in = _B_setup()

    return {
        "A_x": _A_in["x"],
        "A_k_cache": _A_in["k_cache"],
        "A_v_cache": _A_in["v_cache"],
        "A_wq": _A_in["wq"],
        "A_wo": _A_in["wo"],
        "B_x": _B_in["x"],
        "B_w1": _B_in["w1"],
        "B_b1": _B_in["b1"],
        "B_w2": _B_in["w2"],
        "B_b2": _B_in["b2"],
    }

def reference(A_x, A_k_cache, A_v_cache, A_wq, A_wo, B_x, B_w1, B_b1, B_w2, B_b2):
    def _A_ref(x, k_cache, v_cache, wq, wo):
        B, Sq, D = x.shape
        Hq, Dh = 32, 128
        Hkv, Sk = k_cache.shape[1], k_cache.shape[2]
        W = min(4096, max(256, Sk // 4))
        rep = Hq // Hkv
        q = (lambda x, *d: x.permute(*d))((x @ wq).reshape(B, Sq, Hq, Dh), 0, 2, 1, 3)
        k = (lambda x, n, axis: torch.repeat_interleave(x, n, dim=axis))(k_cache[:, :, Sk - W:, :], rep, axis=1)
        v = (lambda x, n, axis: torch.repeat_interleave(x, n, dim=axis))(v_cache[:, :, Sk - W:, :], rep, axis=1)
        scores = torch.einsum("bhqd,bhkd->bhqk", q, k) * (Dh ** -0.5)
        p = _softmax(scores, axis=-1)
        o = torch.einsum("bhqk,bhkd->bhqd", p, v)
        return (lambda x, *d: x.permute(*d))(o, 0, 2, 1, 3).reshape(B, Sq, Hq * Dh) @ wo

    def _B_ref(x, w1, b1, w2, b2):
        h = torch.einsum("bsd,df->bsf", x, w1) + b1
        h = _gelu(h)
        return torch.einsum("bsf,fd->bsd", h, w2) + b2

    x = A_x
    h = x + _A_ref(_layernorm(x, axis=-1), A_k_cache, A_v_cache, A_wq, A_wo)
    h2 = h + _B_ref(_layernorm(h, axis=-1), B_w1, B_b1, B_w2, B_b2)
    return h2
```

```python
import re

TRANS = ("v_exp_f32", "v_log_f32", "v_rcp_f32", "v_rsq_f32", "v_sqrt_f32", "v_sin_f32", "v_cos_f32")
_reg_re = re.compile(r"\b([vsa])\[(\d+):(\d+)\]|\b([vsa])(\d+)\b|\b(vcc|exec)\b")


def regs_of(op):
    out = set()
    for m in _reg_re.finditer(op):
        if m.group(1):
            for i in range(int(m.group(2)), int(m.group(3)) + 1):
                out.add(m.group(1) + str(i))
        elif m.group(4):
            out.add(m.group(4) + m.group(5))
        else:
            out.add(m.group(6))
    return out


class Ins:
    def __init__(self, text):
        self.text = text
        t = text.split(";")[0].strip()
        self.mn = t.split()[0] if t else ""
        rest = t[len(self.mn):].strip()
        ops, depth, cur = [], 0, ""
        for ch in rest:
            if ch == "[":
                depth += 1
            if ch == "]":
                depth -= 1
            if ch == "," and depth == 0:
                ops.append(cur.strip())
                cur = ""
            else:
                cur += ch
        if cur.strip():
            ops.append(cur.strip())
        self.mods = ""
        if ops:
            parts = ops[-1].split(None, 1)
            ops[-1] = parts[0]
            if len(parts) > 1:
                self.mods = parts[1]
        self.ops = ops
        mn = self.mn
        self.is_valu = mn.startswith("v_")
        self.is_mfma = mn.startswith("v_mfma")
        self.is_dot = mn.startswith("v_dot")
        self.is_trans = any(mn.startswith(x) for x in TRANS)
        self.is_dpp = "_dpp" in mn
        self.is_permlane = mn.startswith("v_permlane")
        self.is_readlane = mn.startswith("v_readlane") or mn.startswith("v_readfirstlane")
        self.is_vmem = mn.startswith(("global_", "buffer_", "flat_"))
        self.is_ds = mn.startswith("ds_")
        self.is_store = self.is_vmem and ("store" in mn or "atomic" in mn)
        self.is_salu = mn.startswith("s_")
        self.w, self.r = set(), set()
        if self.is_valu:
            if self.is_permlane:
                self.w = regs_of(ops[0]) | regs_of(ops[1])
                self.r = set(self.w)
            else:
                self.w = regs_of(ops[0])
                for o in ops[1:]:
                    self.r |= regs_of(o)
                if mn.startswith(("v_fmac", "v_dot2c", "v_pk_fmac")):
                    self.r |= self.w
                if self.is_dpp:
                    self.r |= self.w
                if mn.startswith(("v_add_co", "v_sub_co", "v_addc_co", "v_subb_co")):
                    self.w |= regs_of(ops[1])
                if mn.startswith("v_cndmask") and len(ops) == 3:
                    self.r.add("vcc")
        elif self.is_vmem or self.is_ds:
            isload = ("load" in mn) or mn.startswith(("ds_read", "ds_bpermute", "ds_permute", "ds_swizzle"))
            if isload:
                self.w = regs_of(ops[0])
                for o in ops[1:]:
                    self.r |= regs_of(o)
            else:
                for o in ops:
                    self.r |= regs_of(o)
        self.passes = 0
        if self.is_mfma:
            self.passes = 8 if "32x32" in mn else 4
            self.srcc = regs_of(ops[3])
            self.srcab = regs_of(ops[1]) | regs_of(ops[2])
        self.wide_store_data = set()
        if self.is_store and ("x4" in mn or "x3" in mn):
            self.wide_store_data = regs_of(ops[1]) if mn.startswith("global") else regs_of(ops[0])

    def states(self):
        if self.mn == "s_nop":
            return int(self.ops[0]) + 1
        return 1


def need(prev, cur):
    n = 0
    pv = {x for x in prev.w if x[0] in "va" and x not in ("vcc",)}
    ps = {x for x in prev.w if x[0] == "s" or x == "vcc"}
    if prev.is_mfma:
        P = prev.passes
        big = {4: 8, 8: 12}[P]
        if cur.is_mfma:
            if cur.srcab & pv:
                n = max(n, big)
            if cur.srcc & pv and not (cur.srcc == prev.w and cur.passes == prev.passes):
                n = max(n, {4: 6, 8: 10}[P])
        else:
            if (cur.r | cur.w) & pv:
                n = max(n, big)
            if cur.is_valu and (cur.w & prev.srcc):
                n = max(n, {4: 3, 8: 7}[P])
        return n
    if prev.is_valu:
        if pv & cur.r:
            if cur.is_dpp or cur.is_permlane or cur.is_mfma:
                n = max(n, 2)
            if cur.is_readlane:
                n = max(n, 1)
            if prev.is_trans and not cur.is_trans:
                n = max(n, 1)
        if prev.is_dot and (pv & (cur.r | cur.w)):
            same = cur.mn == prev.mn
            if same:
                ab = regs_of(cur.ops[1]) | regs_of(cur.ops[2])
                if pv & ab:
                    n = max(n, 3)
            else:
                n = max(n, 3)
        if ps & cur.r:
            if cur.is_valu:
                n = max(n, 4 if (cur.mn.startswith("v_readlane") or cur.mn.startswith("v_writelane")) else 2)
            if cur.is_vmem:
                n = max(n, 5)
    if prev.wide_store_data and (prev.wide_store_data & cur.w):
        n = max(n, 2)
    return n


class Asm:
    def __init__(self):
        self.lines = []
        self.hist = []
        self.nlabel = 0

    def raw(self, s):
        self.lines.append(s)

    def label(self, name, flush=True):
        if flush:
            self.pad_all()
        self.lines.append(name + ":")

    def pad_all(self):
        req = 0
        dist = 0
        for p in reversed(self.hist):
            if p.is_mfma:
                req = max(req, {4: 8, 8: 12}[p.passes] - dist)
            elif p.is_valu:
                m = 2
                if p.is_dot:
                    m = 3
                if any(x[0] == "s" or x == "vcc" for x in p.w):
                    m = 5
                req = max(req, m - dist)
            elif p.wide_store_data:
                req = max(req, 2 - dist)
            dist += p.states()
            if dist > 16:
                break
        if req > 0:
            self._nop(req)
        self.hist = []

    def _nop(self, n):
        while n > 0:
            k = min(n, 8)
            i = Ins(f"s_nop {k-1}")
            self.lines.append("    " + i.text)
            self.hist.append(i)
            n -= k

    def __call__(self, text):
        for t in text.strip().split("\n"):
            t = t.strip()
            if not t:
                continue
            if t.startswith(";"):
                self.lines.append("    " + t)
                continue
            cur = Ins(t)
            dist = 0
            req = 0
            for p in reversed(self.hist):
                k = need(p, cur)
                if k > dist:
                    req = max(req, k - dist)
                dist += p.states()
                if dist > 16:
                    break
            if req > 0:
                self._nop(req)
            if cur.mn.startswith(("s_cbranch", "s_branch")):
                self.pad_all()
            self.lines.append("    " + t)
            self.hist.append(cur)
            if len(self.hist) > 40:
                self.hist = self.hist[-40:]

    def newlabel(self, base="L"):
        self.nlabel += 1
        return f"{base}_{self.nlabel}"

    def text(self):
        return "\n".join(self.lines) + "\n"
```

```python
import sys
from asmlib import Asm

NAME = "sequential_preLN__sliding_block_cached__dense_activation_gelu__decode"

EPOCH = 0
FLAGS = 4096
QBUF = 8192
MLBUF = 32768
HBUF = 49152
OBUF = 65536
PBUF = 1 << 20
PP = 4352
YBUF = 3 << 20
YP = 1280
STAMP = 8 << 20

L_P1 = 0
L_Q = 1024
L_ML = 2048
L_HL = 2304
L_OL = 4352
L_TOTAL = L_OL + 16 * 2304

NMLP = 56
LOG2E = 0x3FB8AA3B
SCALE = 0x3DB504F3
DPPM = "row_mask:0xf bank_mask:0xf"


def gen(stamps=False):
    a = Asm()
    R = a.raw
    R(f"; @launch grid=(256,1,1) block=(576,1,1) lds={L_TOTAL}")
    R('.amdgcn_target "amdgcn-amd-amdhsa--gfx950"')
    R(".text")
    R(f".globl {NAME}_kernel")
    R(".p2align 8")
    R(f".type {NAME}_kernel,@function")
    R(f"{NAME}_kernel:")

    nst = [0]

    def stamp():
        if not stamps:
            return
        i = nst[0]
        nst[0] += 1
        a(f"s_memrealtime s[{70+2*i}:{71+2*i}]")

    def stamp_dump(n):
        if not stamps:
            return
        a("s_waitcnt lgkmcnt(0)")
        a("s_lshl_b32 s36, s2, 4")
        a("s_add_u32 s36, s36, s3")
        a("s_lshl_b32 s36, s36, 6")
        a(f"s_add_u32 s36, s36, {STAMP}")
        a("v_mov_b32 v2, s36")
        a("s_mov_b64 exec, 1")
        for i in range(n):
            a(f"v_mov_b32 v3, s{70+2*i}")
            a(f"global_store_dword v2, v3, s[28:29] offset:{4*i}")
        a("s_mov_b64 exec, -1")

    stamp()
    a("s_cmp_ge_u32 s2, 256")
    a("s_cbranch_scc1 L_end")
    a("s_load_dwordx16 s[4:19], s[0:1], 0")
    a("s_load_dwordx8 s[20:27], s[0:1], 64")
    a("s_load_dwordx2 s[28:29], s[0:1], 96")
    a("v_lshrrev_b32 v1, 6, v0")
    a("v_readfirstlane_b32 s3, v1")
    a("v_and_b32 v1, 63, v0")
    a("s_and_b32 s30, s2, 7")
    a("s_lshr_b32 s31, s2, 3")
    a("s_lshr_b32 s32, s31, 4")
    a("s_and_b32 s33, s31, 15")
    a("s_mul_i32 s35, s30, 7")
    a("s_add_u32 s35, s35, s31")
    a("s_mov_b32 s62, 100000")
    a("s_mov_b32 s40, 0x05040100")
    a("s_mov_b32 s41, 0x07060302")
    a("v_and_b32 v4, 15, v1")
    a("v_lshrrev_b32 v5, 4, v1")
    a("s_waitcnt lgkmcnt(0)")
    a("s_cmp_eq_u32 s3, 8")
    a("s_cbranch_scc1 L_comm")

    X0, X1 = 8, 12
    XR = 16
    WQ = 20
    K = 28
    V = 44
    WO = 60
    W1 = 76
    W2 = 92
    B1 = 124
    T = 128

    def wait2(n_non, n_mlp):
        l1 = a.newlabel("Lw")
        l2 = a.newlabel("Lw")
        a(f"s_cmp_lt_u32 s2, {NMLP}")
        a(f"s_cbranch_scc1 {l1}")
        a(f"s_waitcnt vmcnt({n_non})")
        a(f"s_branch {l2}")
        a.label(l1)
        a(f"s_waitcnt vmcnt({n_mlp})")
        a.label(l2)

    a("v_lshlrev_b32 v2, 4, v1")
    a(f"global_load_dwordx4 v[{X0}:{X0+3}], v2, s[4:5]")
    a(f"global_load_dwordx4 v[{X1}:{X1+3}], v2, s[4:5] offset:1024")
    a("v_and_b32 v3, -2, v0")
    for i, off in enumerate((0, 512, 1024, 1536)):
        a(f"global_load_ushort v{XR+i}, v3, s[4:5] offset:{off}")
    a("v_lshlrev_b32 v3, 12, v3")
    a("v_and_b32 v6, 1, v0")
    a("v_lshl_add_u32 v3, v6, 4, v3")
    a("s_lshl_b32 s36, s30, 10")
    a("s_lshl_b32 s37, s31, 5")
    a("s_add_u32 s36, s36, s37")
    a("v_add_u32 v3, s36, v3")
    a(f"global_load_dwordx4 v[{WQ}:{WQ+3}], v3, s[10:11]")
    a("v_add_u32 v3, 0x200000, v3")
    a(f"global_load_dwordx4 v[{WQ+4}:{WQ+7}], v3, s[10:11]")
    a("s_lshl_b32 s36, s32, 3")
    a("s_add_u32 s36, s36, s30")
    a("s_lshl_b32 s36, s36, 21")
    a("s_lshl_b32 s37, s33, 15")
    a("s_add_u32 s36, s36, s37")
    a("s_lshl_b32 s37, s3, 12")
    a("s_add_u32 s36, s36, s37")
    a("s_add_u32 s36, s36, 0x180000")
    a("v_lshlrev_b32 v3, 8, v4")
    a("v_lshl_add_u32 v3, v5, 4, v3")
    a("v_add_u32 v3, s36, v3")
    for s in range(4):
        a(f"global_load_dwordx4 v[{K+4*s}:{K+4*s+3}], v3, s[6:7] offset:{64*s}")
    a("v_lshlrev_b32 v3, 10, v5")
    a("v_lshl_add_u32 v3, v4, 4, v3")
    a("v_add_u32 v3, s36, v3")
    for e in range(4):
        a(f"global_load_dwordx4 v[{V+4*e}:{V+4*e+3}], v3, s[8:9] offset:{256*e}")
    a("s_and_b32 s38, s3, 3")
    a("s_lshl_b32 s38, s38, 8")
    a("s_lshl_b32 s36, s30, 19")
    a("s_lshl_b32 s37, s31, 12")
    a("s_add_u32 s36, s36, s37")
    a("s_add_u32 s36, s36, s38")
    a("v_lshlrev_b32 v3, 17, v5")
    a("v_lshl_add_u32 v3, v4, 4, v3")
    a("v_add_u32 v3, s36, v3")
    for e in range(4):
        a(f"global_load_dwordx4 v[{WO+4*e}:{WO+4*e+3}], v3, s[12:13] offset:{1024*e}")
    a(f"s_cmp_ge_u32 s2, {NMLP}")
    a("s_cbranch_scc1 L_nomlpload")
    a("s_mul_i32 s36, s3, 229376")
    a("s_lshl_b32 s37, s35, 6")
    a("s_add_u32 s36, s36, s37")
    a("v_mul_u32_u24 v3, 28672, v5")
    a("v_lshl_add_u32 v3, v4, 2, v3")
    a("v_add_u32 v3, s36, v3")
    for ks in range(2):
        for e in range(8):
            off = (ks * 32 + e) * 3584
            if off < 4096:
                a(f"global_load_dword v{W1+ks*8+e}, v3, s[16:17] offset:{off}")
            else:
                a(f"v_add_u32 v6, {off}, v3")
                a(f"global_load_dword v{W1+ks*8+e}, v6, s[16:17]")
    a("s_lshl_b32 s36, s35, 15")
    a("s_add_u32 s36, s36, s38")
    a("v_lshlrev_b32 v3, 13, v5")
    a("v_lshl_add_u32 v3, v4, 4, v3")
    a("v_add_u32 v3, s36, v3")
    a("v_add_u32 v6, 4096, v3")
    for e in range(8):
        a(f"global_load_dwordx4 v[{W2+4*e}:{W2+4*e+3}], v{3 if e < 4 else 6}, s[20:21] offset:{1024*(e&3)}")
    a("v_and_b32 v6, 7, v1")
    a("v_lshl_add_u32 v6, v5, 3, v6")
    a("s_lshl_b32 s36, s35, 5")
    a("v_add_lshl_u32 v6, v6, s36, 1")
    a(f"global_load_ushort v{B1}, v6, s[18:19]")
    a.label("L_nomlpload")
    NM = 25
    stamp()

    wait2(14 + 4, 14 + 4 + NM)
    F = T
    for b in range(2):
        for u in range(4):
            src = (X0 if b == 0 else X1) + u
            a(f"v_lshlrev_b32 v{F+b*8+2*u}, 16, v{src}")
            a(f"v_and_b32 v{F+b*8+2*u+1}, 0xffff0000, v{src}")
    S0, S1, U = T + 16, T + 17, T + 18

    def sum8(dst, base):
        a(f"v_add_f32 v{dst}, v{base}, v{base+1}")
        for i in range(2, 8):
            a(f"v_add_f32 v{dst}, v{dst}, v{base+i}")

    def half_reduce(s0, s1, u):
        a(f"v_permlane32_swap_b32 v{s0}, v{s1}")
        a(f"v_add_f32 v{s0}, v{s0}, v{s1}")
        a(f"v_mov_b32 v{u}, v{s0}")
        a(f"v_permlane16_swap_b32 v{s0}, v{u}")
        a(f"v_add_f32 v{s0}, v{s0}, v{u}")
        for n in (1, 2, 4, 8):
            a(f"v_add_f32_dpp v{s0}, v{s0}, v{s0} row_ror:{n} {DPPM}")

    sum8(S0, F)
    sum8(S1, F + 8)
    half_reduce(S0, S1, U)
    MEAN = T + 19
    a(f"v_mul_f32 v{MEAN}, 0x3b000000, v{S0}")
    a(f"v_readlane_b32 s44, v{MEAN}, 0")
    a(f"v_readlane_b32 s45, v{MEAN}, 32")
    for b in range(2):
        for i in range(8):
            a(f"v_subrev_f32 v{F+b*8+i}, s{44+b}, v{F+b*8+i}")
    for b in range(2):
        d = S0 if b == 0 else S1
        a(f"v_mul_f32 v{d}, v{F+b*8}, v{F+b*8}")
        for i in range(1, 8):
            a(f"v_fmac_f32 v{d}, v{F+b*8+i}, v{F+b*8+i}")
    half_reduce(S0, S1, U)

    def ln_scalars(var_sum, mean, t0, t1, t2, sm, ssd, srinv):
        a(f"v_mul_f32 v{var_sum}, 0x3b000000, v{var_sum}")
        a(f"v_cvt_pk_bf16_f32 v{t0}, v{var_sum}, v{mean}")
        a(f"v_and_b32 v{mean}, 0xffff0000, v{t0}")
        a(f"v_lshlrev_b32 v{t0}, 16, v{t0}")
        a(f"v_add_f32 v{t0}, 0x3727c5ac, v{t0}")
        a(f"v_cvt_pk_bf16_f32 v{t0}, v{t0}, v{t0}")
        a(f"v_lshlrev_b32 v{t0}, 16, v{t0}")
        a(f"v_sqrt_f32 v{t1}, v{t0}")
        a(f"v_rcp_f32 v{t2}, v{t1}")
        a(f"v_fma_f32 v{t0}, -v{t1}, v{t1}, v{t0}")
        a(f"v_mul_f32 v{t2}, 0.5, v{t2}")
        a(f"v_fmac_f32 v{t1}, v{t0}, v{t2}")
        a(f"v_cvt_pk_bf16_f32 v{t1}, v{t1}, v{t1}")
        a(f"v_lshlrev_b32 v{t1}, 16, v{t1}")
        a(f"v_rcp_f32 v{t2}, v{t1}")
        a(f"v_fma_f32 v{t0}, -v{t1}, v{t2}, 1.0")
        a(f"v_fmac_f32 v{t2}, v{t0}, v{t2}")
        a(f"v_readlane_b32 s{sm}, v{mean}, 0")
        a(f"v_readlane_b32 s{sm+1}, v{mean}, 32")
        a(f"v_readlane_b32 s{ssd}, v{t1}, 0")
        a(f"v_readlane_b32 s{ssd+1}, v{t1}, 32")
        a(f"v_readlane_b32 s{srinv}, v{t2}, 0")
        a(f"v_readlane_b32 s{srinv+1}, v{t2}, 32")

    ln_scalars(S0, MEAN, T + 20, T + 21, T + 22, 44, 46, 48)
    wait2(14, 14 + NM)
    XN = T + 24
    for i in range(4):
        b = i >> 1
        x = XR + i
        a(f"v_lshlrev_b32 v{x}, 16, v{x}")
        a(f"v_subrev_f32 v{x}, s{44+b}, v{x}")
        a(f"v_cvt_pk_bf16_f32 v{x}, v{x}, v{x}")
        a(f"v_lshlrev_b32 v{x}, 16, v{x}")
        a(f"v_mul_f32 v{XN+i}, s{48+b}, v{x}")
        a(f"v_fma_f32 v{x}, -v{XN+i}, s{46+b}, v{x}")
        a(f"v_fma_f32 v{XN+i}, v{x}, s{48+b}, v{XN+i}")
        a(f"v_cvt_pk_bf16_f32 v{XN+i}, v{XN+i}, v{XN+i}")
        a(f"v_lshlrev_b32 v{XN+i}, 16, v{XN+i}")
    wait2(12, 12 + NM)
    stamp()
    ACC = T
    WF = T + 16
    for row in range(2):
        for u in range(4):
            src = WQ + row * 4 + u
            a(f"v_lshlrev_b32 v{WF}, 16, v{src}")
            a(f"v_and_b32 v{WF+1}, 0xffff0000, v{src}")
            for b in range(2):
                for p in range(2):
                    op = "v_mul_f32" if row == 0 else "v_fmac_f32"
                    a(f"{op} v{ACC+b*8+2*u+p}, v{XN+b*2+row}, v{WF+p}")
    for e in range(8):
        a(f"v_permlane32_swap_b32 v{ACC+e}, v{ACC+8+e}")
    for e in range(8):
        a(f"v_add_f32 v{ACC+e}, v{ACC+e}, v{ACC+8+e}")
    for e in range(4):
        a(f"v_permlane16_swap_b32 v{ACC+e}, v{ACC+4+e}")
    for e in range(4):
        a(f"v_add_f32 v{ACC+e}, v{ACC+e}, v{ACC+4+e}")
    for n in (2, 4, 8):
        for e in range(4):
            a(f"v_add_f32_dpp v{ACC+e}, v{ACC+e}, v{ACC+e} row_ror:{n} {DPPM}")
    a("v_lshrrev_b32 v6, 1, v5")
    a("v_lshlrev_b32 v6, 6, v6")
    a("v_and_b32 v7, 1, v5")
    a("v_lshl_add_u32 v6, v7, 4, v6")
    a("v_and_b32 v7, 1, v1")
    a("v_lshl_add_u32 v6, v7, 5, v6")
    a("s_lshl_b32 s36, s3, 7")
    a("v_add_u32 v6, s36, v6")
    a("v_cmp_gt_u32 vcc, 2, v4")
    a("s_and_saveexec_b64 s[36:37], vcc")
    a(f"ds_write_b128 v6, v[{ACC}:{ACC+3}] offset:{L_P1}")
    a("s_mov_b64 exec, -1")
    a("s_waitcnt lgkmcnt(0)")
    a("s_barrier")
    stamp()
    a("v_and_b32 v6, 4, v4")
    a("v_cmp_ne_u32 s[42:43], 0, v6")
    a("v_and_b32 v6, 3, v4")
    a("v_lshlrev_b32 v6, 8, v6")
    a("v_lshl_add_u32 v6, v5, 4, v6")
    a("s_barrier")
    stamp()
    Q = T
    for s in range(4):
        a(f"ds_read_b128 v[{Q+4*s}:{Q+4*s+3}], v6 offset:{L_Q+64*s}")
    wait2(8, 8 + NM)
    stamp()
    SA = T + 16
    for s in range(4):
        a(f"s_waitcnt lgkmcnt({3-s})")
        c = "0" if s == 0 else f"v[{SA}:{SA+3}]"
        a(f"v_mfma_f32_16x16x32_bf16 v[{SA}:{SA+3}], v[{K+4*s}:{K+4*s+3}], v[{Q+4*s}:{Q+4*s+3}], {c}")
    Z = T + 20
    TT = T + 24
    a("s_mov_b32 s36, 0x%08x" % SCALE)
    a("s_mov_b32 s37, 0x%08x" % LOG2E)
    a(f"v_cvt_pk_bf16_f32 v{TT}, v{SA}, v{SA+1}")
    a(f"v_cvt_pk_bf16_f32 v{TT+1}, v{SA+2}, v{SA+3}")
    for i in range(2):
        a(f"v_lshlrev_b32 v{Z+2*i}, 16, v{TT+i}")
        a(f"v_and_b32 v{Z+2*i+1}, 0xffff0000, v{TT+i}")
    for i in range(4):
        a(f"v_mul_f32 v{Z+i}, s36, v{Z+i}")
    a(f"v_cvt_pk_bf16_f32 v{TT}, v{Z}, v{Z+1}")
    a(f"v_cvt_pk_bf16_f32 v{TT+1}, v{Z+2}, v{Z+3}")
    for i in range(2):
        a(f"v_lshlrev_b32 v{Z+2*i}, 16, v{TT+i}")
        a(f"v_and_b32 v{Z+2*i+1}, 0xffff0000, v{TT+i}")
    M = T + 28
    Lr = T + 29
    a(f"v_max3_f32 v{M}, v{Z}, v{Z+1}, v{Z+2}")
    a(f"v_max_f32 v{M}, v{M}, v{Z+3}")
    a(f"v_mov_b32 v{TT}, v{M}")
    a(f"v_permlane16_swap_b32 v{M}, v{TT}")
    a(f"v_max_f32 v{M}, v{M}, v{TT}")
    a(f"v_mov_b32 v{TT}, v{M}")
    a(f"v_permlane32_swap_b32 v{M}, v{TT}")
    a(f"v_max_f32 v{M}, v{M}, v{TT}")
    for i in range(4):
        a(f"v_sub_f32 v{Z+i}, v{Z+i}, v{M}")
    for i in range(4):
        a(f"v_mul_f32 v{Z+i}, s37, v{Z+i}")
    for i in range(4):
        a(f"v_exp_f32 v{Z+i}, v{Z+i}")
    a(f"v_add_f32 v{Lr}, v{Z}, v{Z+1}")
    a(f"v_add_f32 v{TT}, v{Z+2}, v{Z+3}")
    a(f"v_add_f32 v{Lr}, v{Lr}, v{TT}")
    PH = T + 30
    PL = T + 32
    a(f"v_cvt_pk_bf16_f32 v{PH}, v{Z}, v{Z+1}")
    a(f"v_cvt_pk_bf16_f32 v{PH+1}, v{Z+2}, v{Z+3}")
    a(f"v_mov_b32 v{TT}, v{Lr}")
    a(f"v_permlane16_swap_b32 v{Lr}, v{TT}")
    a(f"v_add_f32 v{Lr}, v{Lr}, v{TT}")
    for i in range(2):
        a(f"v_lshlrev_b32 v{TT+1}, 16, v{PH+i}")
        a(f"v_and_b32 v{TT+2}, 0xffff0000, v{PH+i}")
        a(f"v_sub_f32 v{Z+2*i}, v{Z+2*i}, v{TT+1}")
        a(f"v_sub_f32 v{Z+2*i+1}, v{Z+2*i+1}, v{TT+2}")
    a(f"v_mov_b32 v{TT}, v{Lr}")
    a(f"v_permlane32_swap_b32 v{Lr}, v{TT}")
    a(f"v_add_f32 v{Lr}, v{Lr}, v{TT}")
    a(f"v_cvt_pk_bf16_f32 v{PL}, v{Z}, v{Z+1}")
    a(f"v_cvt_pk_bf16_f32 v{PL+1}, v{Z+2}, v{Z+3}")
    a(f"v_cndmask_b32 v{PH}, v{PH}, v{PL}, s[42:43]")
    a(f"v_cndmask_b32 v{PH+1}, v{PH+1}, v{PL+1}, s[42:43]")
    a("v_lshlrev_b32 v6, 6, v1")
    a("s_lshl_b32 s38, s3, 3")
    a("v_add_u32 v6, s38, v6")
    a("s_mov_b64 exec, 15")
    a(f"ds_write_b64 v6, v[{M}:{M+1}] offset:{L_ML}")
    a("s_mov_b64 exec, -1")
    wait2(4, 4 + NM)
    stamp()
    VF = K
    for u in range(4):
        for par in range(2):
            e = 2 * u + par
            sel = "s40" if par == 0 else "s41"
            a(f"v_perm_b32 v{VF+2*e}, v{V+4+u}, v{V+u}, {sel}")
            a(f"v_perm_b32 v{VF+2*e+1}, v{V+12+u}, v{V+8+u}, {sel}")
    OA = T + 36 - 36
    def oacc(e):
        return (V + 4 * e) if e < 4 else (T + 4 * (e - 4))
    for e in range(8):
        o = oacc(e)
        a(f"v_mfma_f32_16x16x16_bf16 v[{o}:{o+3}], v[{PH}:{PH+1}], v[{VF+2*e}:{VF+2*e+1}], 0")
    a("v_mul_u32_u24 v6, 144, v4")
    a("v_mul_u32_u24 v7, 2304, v5")
    a("v_add_u32 v6, v6, v7")
    a("s_mul_i32 s38, s3, 4608")
    a("v_add_u32 v6, s38, v6")
    a("s_mov_b32 exec_hi, 0")
    for e in range(8):
        o = oacc(e)
        a(f"ds_write_b128 v6, v[{o}:{o+3}] offset:{L_OL+16*e}")
    a("s_mov_b64 exec, -1")
    a("s_waitcnt lgkmcnt(0)")
    a("s_barrier")
    stamp()
    a("v_lshrrev_b32 v6, 5, v0")
    a("v_mul_u32_u24 v6, 144, v6")
    a("v_and_b32 v7, 31, v0")
    a("v_lshl_add_u32 v6, v7, 2, v6")
    a("v_and_b32 v7, 3, v0")
    a("v_lshlrev_b32 v7, 6, v7")
    ML = T
    OV = T + 16
    for w in range(4):
        a(f"ds_read_b128 v[{ML+4*w}:{ML+4*w+3}], v7 offset:{L_ML+16*w}")
    assert L_OL % 256 == 0
    for w in range(8):
        o0 = L_OL // 256 + 18 * w
        a(f"ds_read2st64_b32 v[{OV+2*w}:{OV+2*w+1}], v6 offset0:{o0} offset1:{o0+9}")
    a("s_waitcnt lgkmcnt(8)")
    MM = T + 32
    a(f"v_max3_f32 v{MM}, v{ML}, v{ML+2}, v{ML+4}")
    a(f"v_max3_f32 v{MM}, v{MM}, v{ML+6}, v{ML+8}")
    a(f"v_max3_f32 v{MM}, v{MM}, v{ML+10}, v{ML+12}")
    a(f"v_max_f32 v{MM}, v{MM}, v{ML+14}")
    for w in range(8):
        a(f"v_sub_f32 v{ML+2*w}, v{ML+2*w}, v{MM}")
    for w in range(8):
        a(f"v_mul_f32 v{ML+2*w}, s37, v{ML+2*w}")
    for w in range(8):
        a(f"v_exp_f32 v{ML+2*w}, v{ML+2*w}")
    LL = T + 33
    OO = T + 34
    a(f"v_mul_f32 v{LL}, v{ML}, v{ML+1}")
    for w in range(1, 8):
        a(f"v_fmac_f32 v{LL}, v{ML+2*w}, v{ML+2*w+1}")
    a("s_waitcnt lgkmcnt(0)")
    for w in range(8):
        a(f"v_add_f32 v{OV+2*w}, v{OV+2*w}, v{OV+2*w+1}")
    a(f"v_mul_f32 v{OO}, v{ML}, v{OV}")
    for w in range(1, 8):
        a(f"v_fmac_f32 v{OO}, v{ML+2*w}, v{OV+2*w}")
    a(f"v_min_u32 v{OO}, -2, v{OO}")
    a(f"v_min_u32 v{MM}, -2, v{MM}")
    a(f"v_min_u32 v{LL}, -2, v{LL}")
    for i in range(1, 4):
        a(f"v_mov_b32_dpp v{OO+i}, v{OO} quad_perm:[{i},{i},{i},{i}] {DPPM}")
    a("v_lshrrev_b32 v6, 4, v0")
    a("v_lshlrev_b32 v6, 11, v6")
    a("v_and_b32 v7, 12, v0")
    a("v_lshl_add_u32 v6, v7, 2, v6")
    a("s_lshl_b32 s36, s30, 16")
    a("s_lshl_b32 s38, s32, 10")
    a("s_add_u32 s36, s36, s38")
    a("s_lshl_b32 s38, s33, 6")
    a("s_add_u32 s36, s36, s38")
    a(f"s_add_u32 s36, s36, {OBUF}")
    a("v_add_u32 v6, s36, v6")
    a("s_mov_b32 s38, 0x11111111")
    a("s_mov_b32 s39, 0x11111111")
    a("s_mov_b64 exec, s[38:39]")
    a(f"global_store_dwordx4 v6, v[{OO}:{OO+3}], s[28:29] sc1")
    a("s_mov_b64 exec, -1")
    a("s_cmp_lg_u32 s3, 0")
    a("s_cbranch_scc1 L_noml")
    a("s_lshl_b32 s36, s30, 1")
    a("s_add_u32 s36, s36, s32")
    a("s_lshl_b32 s36, s36, 4")
    a("s_add_u32 s36, s36, s33")
    a("s_lshl_b32 s36, s36, 5")
    a(f"s_add_u32 s36, s36, {MLBUF}")
    a("v_lshlrev_b32 v6, 3, v1")
    a("v_add_u32 v6, s36, v6")
    a("s_mov_b64 exec, 15")
    a(f"global_store_dwordx2 v6, v[{MM}:{MM+1}], s[28:29] sc1")
    a("s_mov_b64 exec, -1")
    a.label("L_noml")
    stamp()
    a("s_waitcnt vmcnt(0)")
    WP = K
    for pr in range(2):
        for u in range(4):
            for par in range(2):
                sel = "s40" if par == 0 else "s41"
                a(f"v_perm_b32 v{WP+pr*8+2*u+par}, v{WO+(2*pr+1)*4+u}, v{WO+(2*pr)*4+u}, {sel}")
    a("s_lshr_b32 s50, s3, 2")
    a("s_lshl_b32 s36, s30, 5")
    a("s_add_u32 s36, s36, s31")
    a("s_lshl_b32 s36, s36, 1")
    a("s_add_u32 s36, s36, s50")
    a("s_lshl_b32 s36, s36, 10")
    a(f"s_add_u32 s36, s36, {OBUF}")
    a("v_lshlrev_b32 v6, 4, v1")
    a("v_add_u32 v6, s36, v6")
    a("s_lshl_b32 s36, s30, 1")
    a("s_add_u32 s36, s36, s50")
    a("s_lshl_b32 s36, s36, 9")
    a(f"s_add_u32 s36, s36, {MLBUF}")
    a("v_lshrrev_b32 v7, 2, v1")
    a("v_lshlrev_b32 v7, 5, v7")
    a("v_add_u32 v7, s36, v7")
    PO = T
    PM = T + 4
    CK = T + 12
    a.label("L_poll_h2")
    a(f"global_load_dwordx4 v[{PO}:{PO+3}], v6, s[28:29] sc1")
    a(f"global_load_dwordx4 v[{PM}:{PM+3}], v7, s[28:29] sc1")
    a(f"global_load_dwordx4 v[{PM+4}:{PM+7}], v7, s[28:29] offset:16 sc1")
    a("s_waitcnt vmcnt(0)")
    a(f"v_max3_u32 v{CK}, v{PO}, v{PO+1}, v{PO+2}")
    for i in range(3, 12, 2):
        if i + 1 < 12:
            a(f"v_max3_u32 v{CK}, v{CK}, v{PO+i}, v{PO+i+1}")
        else:
            a(f"v_max_u32 v{CK}, v{CK}, v{PO+i}")
    a(f"v_cmp_eq_u32 vcc, -1, v{CK}")
    a("s_cbranch_vccz L_poll_h2_ok")
    a("s_sub_u32 s62, s62, 1")
    a("s_cmp_gt_i32 s62, 0")
    a("s_cbranch_scc1 L_poll_h2")
    a.label("L_poll_h2_ok")
    stamp()
    X = T + 12
    for h in range(4):
        a(f"v_mov_b32 v{X+h}, v{PM+2*h}")
    a(f"v_permlane32_swap_b32 v{X}, v{X+2}")
    a(f"v_permlane32_swap_b32 v{X+1}, v{X+3}")
    a(f"v_max_f32 v{X}, v{X}, v{X+2}")
    a(f"v_max_f32 v{X+1}, v{X+1}, v{X+3}")
    a(f"v_permlane16_swap_b32 v{X}, v{X+1}")
    a(f"v_max_f32 v{X}, v{X}, v{X+1}")
    a(f"v_max_f32_dpp v{X}, v{X}, v{X} row_ror:4 {DPPM}")
    a(f"v_max_f32_dpp v{X}, v{X}, v{X} row_ror:8 {DPPM}")
    for h in range(4):
        a(f"v_readlane_b32 s{52+h}, v{X}, {16*h}")
    for h in range(4):
        a(f"v_subrev_f32 v{PM+2*h}, s{52+h}, v{PM+2*h}")
    for h in range(4):
        a(f"v_mul_f32 v{PM+2*h}, s37, v{PM+2*h}")
    for h in range(4):
        a(f"v_exp_f32 v{PM+2*h}, v{PM+2*h}")
    for h in range(4):
        a(f"v_mul_f32 v{PO+h}, v{PM+2*h}, v{PO+h}")
        a(f"v_mul_f32 v{PM+2*h+1}, v{PM+2*h}, v{PM+2*h+1}")
    l = lambda h: PM + 2 * h + 1
    a(f"v_permlane32_swap_b32 v{PO}, v{PO+2}")
    a(f"v_permlane32_swap_b32 v{PO+1}, v{PO+3}")
    a(f"v_permlane32_swap_b32 v{l(0)}, v{l(2)}")
    a(f"v_permlane32_swap_b32 v{l(1)}, v{l(3)}")
    a(f"v_add_f32 v{PO}, v{PO}, v{PO+2}")
    a(f"v_add_f32 v{PO+1}, v{PO+1}, v{PO+3}")
    a(f"v_add_f32 v{l(0)}, v{l(0)}, v{l(2)}")
    a(f"v_add_f32 v{l(1)}, v{l(1)}, v{l(3)}")
    a(f"v_permlane16_swap_b32 v{PO}, v{PO+1}")
    a(f"v_permlane16_swap_b32 v{l(0)}, v{l(1)}")
    a(f"v_add_f32 v{PO}, v{PO}, v{PO+1}")
    a(f"v_add_f32 v{l(0)}, v{l(0)}, v{l(1)}")
    for n in (4, 8):
        a(f"v_add_f32_dpp v{PO}, v{PO}, v{PO} row_ror:{n} {DPPM}")
        a(f"v_add_f32_dpp v{l(0)}, v{l(0)}, v{l(0)} row_ror:{n} {DPPM}")
    a(f"v_rcp_f32 v{X}, v{l(0)}")
    a(f"v_mul_f32 v{X+1}, v{PO}, v{X}")
    a(f"v_fma_f32 v{X+2}, -v{X+1}, v{l(0)}, v{PO}")
    a(f"v_fmac_f32 v{X+1}, v{X+2}, v{X}")
    for i in range(4):
        a(f"v_mov_b32_dpp v{PM+i}, v{X+1} quad_perm:[{i},{i},{i},{i}] {DPPM}")
    OP = T + 16
    a(f"v_cvt_pk_bf16_f32 v{OP}, v{PM}, v{PM+1}")
    a(f"v_cvt_pk_bf16_f32 v{OP+1}, v{PM+2}, v{PM+3}")
    AC = T + 20

    def gemv_tail(npairs, wp, op, buf, pitch, slot_sreg_expr):
        for c in range(8):
            a(f"v_dot2_f32_bf16 v{AC+c}, v{wp+c}, v{op}, 0")
        for pr in range(1, npairs):
            for c in range(8):
                a(f"v_dot2_f32_bf16 v{AC+c}, v{wp+pr*8+c}, v{op+pr}, v{AC+c}")
        for i in range(4):
            a(f"v_permlane32_swap_b32 v{AC+i}, v{AC+4+i}")
        for i in range(4):
            a(f"v_add_f32 v{AC+i}, v{AC+i}, v{AC+4+i}")
        for i in range(2):
            a(f"v_permlane16_swap_b32 v{AC+i}, v{AC+2+i}")
        for i in range(2):
            a(f"v_add_f32 v{AC+i}, v{AC+i}, v{AC+2+i}")
        for i in range(2):
            a(f"v_min_u32 v{AC+i}, -2, v{AC+i}")
        a(f"global_store_dwordx2 v6, v[{AC}:{AC+1}], s[28:29] sc1")

    def piece_addr(buf, pitch, slot):
        a("v_lshrrev_b32 v6, 1, v5")
        a("v_lshl_add_u32 v6, v4, 1, v6")
        a("s_lshl_b32 s36, s3, 5")
        a("v_add_u32 v6, s36, v6")
        a(f"v_mul_u32_u24 v6, {pitch}, v6")
        a("v_and_b32 v7, 1, v5")
        a("v_lshl_add_u32 v6, v7, 3, v6")
        a(f"s_lshl_b32 s36, {slot}, 4")
        a(f"s_add_u32 s36, s36, {buf}")
        a("v_add_u32 v6, s36, v6")

    piece_addr(PBUF, PP, "s2")
    gemv_tail(2, WP, OP, PBUF, PP, None)
    stamp()
    a(f"s_cmp_ge_u32 s2, {NMLP}")
    a("s_cbranch_scc1 L_data_end")
    B1F = V
    for ks in range(2):
        for par in range(2):
            sel = "s40" if par == 0 else "s41"
            for i in range(4):
                a(f"v_perm_b32 v{B1F+ks*8+par*4+i}, v{W1+ks*8+2*i+1}, v{W1+ks*8+2*i}, {sel}")
    W2P = 60
    for pr in range(4):
        for u in range(4):
            for par in range(2):
                sel = "s40" if par == 0 else "s41"
                a(f"v_perm_b32 v{W2P+pr*8+2*u+par}, v{W2+(2*pr+1)*4+u}, v{W2+(2*pr)*4+u}, {sel}")
    a(f"v_lshlrev_b32 v{B1}, 16, v{B1}")
    a("v_lshlrev_b32 v6, 5, v1")
    a(f"v_add_u32 v6, {HBUF}, v6")
    a("v_and_b32 v7, 1, v1")
    a("v_lshlrev_b32 v7, 10, v7")
    a("v_lshl_add_u32 v7, v5, 4, v7")
    a("s_lshl_b32 s36, s3, 7")
    a(f"s_add_u32 s36, s36, {HBUF}")
    a("v_add_u32 v7, s36, v7")
    a("v_and_b32 v2, 1, v1")
    a("v_cmp_ne_u32 s[42:43], 0, v2")
    HS = T
    HF = T + 8
    CK = T + 16
    a.label("L_poll_h3b")
    a(f"global_load_dwordx4 v[{HS}:{HS+3}], v6, s[28:29] sc1")
    a(f"global_load_dwordx4 v[{HS+4}:{HS+7}], v6, s[28:29] offset:16 sc1")
    a(f"global_load_dwordx4 v[{HF}:{HF+3}], v7, s[28:29] sc1")
    a(f"global_load_dwordx4 v[{HF+4}:{HF+7}], v7, s[28:29] offset:64 sc1")
    a("s_waitcnt vmcnt(0)")
    a(f"v_max3_u32 v{CK}, v{HS}, v{HS+1}, v{HS+2}")
    for i in range(3, 16, 2):
        if i + 1 < 16:
            a(f"v_max3_u32 v{CK}, v{CK}, v{HS+i}, v{HS+i+1}")
        else:
            a(f"v_max_u32 v{CK}, v{CK}, v{HS+i}")
    a(f"v_cmp_eq_u32 vcc, -1, v{CK}")
    a("s_cbranch_vccz L_poll_h3b_ok")
    a("s_sub_u32 s62, s62, 1")
    a("s_cmp_gt_i32 s62, 0")
    a("s_cbranch_scc1 L_poll_h3b")
    a.label("L_poll_h3b_ok")
    stamp()
    G = W2
    for u in range(8):
        a(f"v_lshlrev_b32 v{G+2*u}, 16, v{HS+u}")
        a(f"v_and_b32 v{G+2*u+1}, 0xffff0000, v{HS+u}")
    S0 = T + 16
    U = T + 17
    MEAN = T + 18

    def red32(s0, u):
        a(f"v_mov_b32 v{u}, v{s0}")
        a(f"v_permlane16_swap_b32 v{s0}, v{u}")
        a(f"v_add_f32 v{s0}, v{s0}, v{u}")
        for n in (1, 2, 4, 8):
            a(f"v_add_f32_dpp v{s0}, v{s0}, v{s0} row_ror:{n} {DPPM}")

    a(f"v_add_f32 v{S0}, v{G}, v{G+1}")
    a(f"v_add_f32 v{U}, v{G+2}, v{G+3}")
    for i in range(4, 16, 2):
        a(f"v_add_f32 v{S0}, v{S0}, v{G+i}")
        a(f"v_add_f32 v{U}, v{U}, v{G+i+1}")
    a(f"v_add_f32 v{S0}, v{S0}, v{U}")
    red32(S0, U)
    a(f"v_mul_f32 v{MEAN}, 0x3b000000, v{S0}")
    for i in range(16):
        a(f"v_sub_f32 v{G+i}, v{G+i}, v{MEAN}")
    a(f"v_mul_f32 v{S0}, v{G}, v{G}")
    a(f"v_mul_f32 v{U}, v{G+1}, v{G+1}")
    for i in range(2, 16, 2):
        a(f"v_fmac_f32 v{S0}, v{G+i}, v{G+i}")
        a(f"v_fmac_f32 v{U}, v{G+i+1}, v{G+i+1}")
    a(f"v_add_f32 v{S0}, v{S0}, v{U}")
    red32(S0, U)
    ln_scalars(S0, MEAN, T + 19, T + 20, T + 21, 44, 46, 48)
    LM, LS, LR = T + 22, T + 23, T + 24
    for dst, s in ((LM, 44), (LS, 46), (LR, 48)):
        a(f"v_mov_b32 v{dst}, s{s}")
        a(f"v_mov_b32 v{U}, s{s+1}")
        a(f"v_cndmask_b32 v{dst}, v{dst}, v{U}, s[42:43]")
    for u in range(8):
        a(f"v_lshlrev_b32 v{G+2*u}, 16, v{HF+u}")
        a(f"v_and_b32 v{G+2*u+1}, 0xffff0000, v{HF+u}")
    for i in range(16):
        a(f"v_sub_f32 v{G+i}, v{G+i}, v{LM}")
    for u in range(8):
        a(f"v_cvt_pk_bf16_f32 v{HF+u}, v{G+2*u}, v{G+2*u+1}")
    for u in range(8):
        a(f"v_lshlrev_b32 v{G+2*u}, 16, v{HF+u}")
        a(f"v_and_b32 v{G+2*u+1}, 0xffff0000, v{HF+u}")
    G2 = W2 + 16
    for i in range(16):
        a(f"v_mul_f32 v{G2+i}, v{G+i}, v{LR}")
    for i in range(16):
        a(f"v_fma_f32 v{G+i}, -v{G2+i}, v{LS}, v{G+i}")
    for i in range(16):
        a(f"v_fmac_f32 v{G2+i}, v{G+i}, v{LR}")
    for u in range(8):
        a(f"v_cvt_pk_bf16_f32 v{HF+u}, v{G2+2*u}, v{G2+2*u+1}")
    HA = T + 28
    for ks in range(2):
        for par in range(2):
            c = "0" if ks == 0 else f"v[{HA+4*par}:{HA+4*par+3}]"
            a(f"v_mfma_f32_16x16x32_bf16 v[{HA+4*par}:{HA+4*par+3}], v[{HF+4*ks}:{HF+4*ks+3}], v[{B1F+ks*8+par*4}:{B1F+ks*8+par*4+3}], {c}")
    a("v_lshlrev_b32 v6, 3, v4")
    a("s_lshl_b32 s36, s3, 8")
    a(f"s_add_u32 s36, s36, {L_HL}")
    a("v_add_u32 v6, s36, v6")
    a("s_mov_b64 exec, 0xffff")
    a(f"ds_write2_b32 v6, v{HA}, v{HA+4} offset0:0 offset1:1")
    a(f"ds_write2_b32 v6, v{HA+1}, v{HA+5} offset0:32 offset1:33")
    a("s_mov_b64 exec, -1")
    a("s_waitcnt lgkmcnt(0)")
    a("s_barrier")
    stamp()
    a("v_and_b32 v6, 7, v1")
    a("v_lshl_add_u32 v6, v5, 3, v6")
    a("v_lshlrev_b32 v6, 2, v6")
    a("s_lshl_b32 s36, s50, 7")
    a("v_add_u32 v6, s36, v6")
    for w in range(8):
        a(f"ds_read_b32 v{T+w}, v6 offset:{L_HL+256*w}")
    piece_addr(YBUF, YP, "s35")
    a("s_waitcnt lgkmcnt(0)")
    H = T
    for w in range(1, 8):
        a(f"v_add_f32 v{H}, v{H}, v{T+w}")
    a(f"v_cvt_pk_bf16_f32 v{H}, v{H}, v{H}")
    a(f"v_lshlrev_b32 v{H}, 16, v{H}")
    a(f"v_add_f32 v{H}, v{H}, v{B1}")
    a(f"v_cvt_pk_bf16_f32 v{H}, v{H}, v{H}")
    a(f"v_lshlrev_b32 v{H}, 16, v{H}")
    t1, t2 = T + 1, T + 2
    a(f"v_mul_f32 v{t1}, v{H}, v{H}")
    a("s_mov_b32 s36, 0x3d372713")
    a(f"v_fma_f32 v{t1}, v{t1}, s36, 1.0")
    a(f"v_mul_f32 v{t1}, v{t1}, v{H}")
    a(f"v_mul_f32 v{t1}, 0xc0135761, v{t1}")
    a(f"v_exp_f32 v{t1}, v{t1}")
    a(f"v_add_f32 v{t1}, 1.0, v{t1}")
    a(f"v_rcp_f32 v{t2}, v{t1}")
    a(f"v_mul_f32 v{H}, v{H}, v{t2}")
    a(f"v_mov_b32_dpp v{t1}, v{H} quad_perm:[1,0,3,2] {DPPM}")
    a(f"v_cvt_pk_bf16_f32 v{t2}, v{H}, v{t1}")
    GP = T + 4
    for pr in range(4):
        a(f"v_mov_b32_dpp v{GP+pr}, v{t2} row_newbcast:{2*pr} {DPPM}")
    gemv_tail(4, W2P, GP, YBUF, YP, None)
    stamp()
    a.label("L_data_end")
    stamp_dump(14)
    a("s_endpgm")

    nst[0] = 1
    a.label("L_comm")
    a("s_load_dwordx2 s[60:61], s[28:29], 0")
    a("s_lshl_b32 s36, s2, 2")
    a("v_add_lshl_u32 v6, v5, s36, 1")
    a("global_load_ushort v20, v6, s[4:5]")
    a("s_and_b32 s36, s36, 511")
    a("v_add_lshl_u32 v6, v5, s36, 1")
    a("global_load_ushort v21, v6, s[22:23]")
    for i in range(4):
        a(f"v_mov_b32 v{8+i}, -1")
    a("v_lshlrev_b32 v2, 4, v1")
    a("s_lshl_b32 s36, s30, 5")
    a("s_add_u32 s36, s36, s31")
    a("s_lshl_b32 s37, s36, 11")
    a(f"s_add_u32 s37, s37, {OBUF}")
    a("v_add_u32 v6, s37, v2")
    a("global_store_dwordx4 v6, v[8:11], s[28:29] sc1")
    a("global_store_dwordx4 v6, v[8:11], s[28:29] offset:1024 sc1")
    a(f"s_mul_i32 s37, s2, {PP}")
    a(f"s_add_u32 s37, s37, {PBUF}")
    a("v_add_u32 v12, s37, v2")
    for i in range(4):
        a(f"global_store_dwordx4 v12, v[8:11], s[28:29] offset:{1024*i} sc1")
    a(f"s_mul_i32 s37, s2, {YP}")
    a(f"s_add_u32 s37, s37, {YBUF}")
    a("v_add_u32 v13, s37, v2")
    a("global_store_dwordx4 v13, v[8:11], s[28:29] sc1")
    a("s_lshl_b32 s37, s30, 11")
    a("s_lshl_b32 s38, s31, 5")
    a("s_add_u32 s37, s37, s38")
    a(f"s_add_u32 s37, s37, {QBUF}")
    a("v_and_b32 v6, 1, v1")
    a("v_lshlrev_b32 v6, 4, v6")
    a("v_lshrrev_b32 v7, 1, v1")
    a("v_lshl_add_u32 v6, v7, 10, v6")
    a("v_add_u32 v6, s37, v6")
    a("s_mov_b64 exec, 15")
    a("global_store_dwordx4 v6, v[8:11], s[28:29] sc1")
    a("s_mov_b64 exec, -1")
    a("s_lshl_b32 s38, s30, 1")
    a("s_add_u32 s38, s38, s32")
    a("s_lshl_b32 s38, s38, 4")
    a("s_add_u32 s38, s38, s33")
    a("s_lshl_b32 s38, s38, 5")
    a(f"s_add_u32 s38, s38, {MLBUF}")
    a("v_add_u32 v6, s38, v2")
    a("s_mov_b64 exec, 3")
    a("global_store_dwordx4 v6, v[8:11], s[28:29] sc1")
    a("s_mov_b64 exec, -1")
    a("s_lshl_b32 s38, s2, 3")
    a(f"s_add_u32 s38, s38, {HBUF}")
    a("v_mov_b32 v14, s38")
    a("s_mov_b64 exec, 1")
    a("global_store_dwordx2 v14, v[8:9], s[28:29] sc1")
    a("s_mov_b64 exec, -1")
    a("s_waitcnt vmcnt(0) lgkmcnt(0)")
    a("s_add_u32 s60, s60, 1")
    a("s_addc_u32 s61, s61, 0")
    a("v_mov_b32 v16, s60")
    a("v_mov_b32 v17, s61")
    a("s_lshl_b32 s38, s36, 3")
    a(f"s_add_u32 s38, s38, {FLAGS}")
    a("v_mov_b32 v6, s38")
    a("s_mov_b64 exec, 1")
    a("global_store_dwordx2 v6, v[16:17], s[28:29] sc1")
    a("s_mov_b64 exec, -1")
    stamp()
    a("v_lshlrev_b32 v20, 16, v20")
    a("v_lshlrev_b32 v21, 16, v21")
    a("s_barrier")
    stamp()
    a("v_and_b32 v6, 31, v1")
    a("v_lshlrev_b32 v6, 2, v6")
    for w in range(8):
        a(f"ds_read_b32 v{24+w}, v6 offset:{L_P1+128*w}")
    a("s_waitcnt lgkmcnt(0)")
    for w in range(1, 8):
        a(f"v_add_f32 v24, v24, v{24+w}")
    a(f"v_mov_b32_dpp v25, v24 quad_perm:[1,0,3,2] {DPPM}")
    a("v_cvt_pk_bf16_f32 v24, v24, v25")
    a("v_min_u32 v24, -2, v24")
    a("v_lshlrev_b32 v6, 10, v5")
    a("v_lshl_add_u32 v6, v4, 1, v6")
    a("v_add_u32 v6, s37, v6")
    a("s_mov_b64 exec, 0x55555555")
    a("global_store_dword v6, v24, s[28:29] sc1")
    a("s_mov_b64 exec, -1")
    stamp()
    a("v_and_b32 v6, 31, v1")
    a("v_lshlrev_b32 v6, 3, v6")
    a("s_lshl_b32 s38, s30, 8")
    a(f"s_add_u32 s38, s38, {FLAGS}")
    a("v_add_u32 v6, s38, v6")
    a.label("L_poll_gf")
    a("global_load_dwordx2 v[24:25], v6, s[28:29] sc1")
    a("s_waitcnt vmcnt(0)")
    a("v_cmp_ne_u64 vcc, s[60:61], v[24:25]")
    a("s_cbranch_vccz L_poll_gf_ok")
    a("s_sub_u32 s62, s62, 1")
    a("s_cmp_gt_i32 s62, 0")
    a("s_cbranch_scc1 L_poll_gf")
    a.label("L_poll_gf_ok")
    stamp()
    a("s_lshl_b32 s38, s30, 11")
    a("s_lshl_b32 s39, s32, 10")
    a("s_add_u32 s38, s38, s39")
    a(f"s_add_u32 s38, s38, {QBUF}")
    a("v_add_u32 v6, s38, v2")
    a.label("L_poll_q")
    a("global_load_dwordx4 v[24:27], v6, s[28:29] sc1")
    a("s_waitcnt vmcnt(0)")
    a("v_max3_u32 v28, v24, v25, v26")
    a("v_max_u32 v28, v28, v27")
    a("v_cmp_eq_u32 vcc, -1, v28")
    a("s_cbranch_vccz L_poll_q_ok")
    a("s_sub_u32 s62, s62, 1")
    a("s_cmp_gt_i32 s62, 0")
    a("s_cbranch_scc1 L_poll_q")
    a.label("L_poll_q_ok")
    a(f"ds_write_b128 v2, v[24:27] offset:{L_Q}")
    a("s_waitcnt lgkmcnt(0)")
    a("s_barrier")
    stamp()
    a("v_lshlrev_b32 v6, 5, v1")
    a(f"v_add_u32 v6, {FLAGS}, v6")
    a.label("L_poll_af")
    a("global_load_dwordx4 v[24:27], v6, s[28:29] sc1")
    a("global_load_dwordx4 v[28:31], v6, s[28:29] offset:16 sc1")
    a("s_waitcnt vmcnt(0)")
    a("v_cmp_ne_u64 vcc, s[60:61], v[24:25]")
    a("v_cmp_ne_u64 s[38:39], s[60:61], v[26:27]")
    a("s_or_b64 vcc, vcc, s[38:39]")
    a("v_cmp_ne_u64 s[38:39], s[60:61], v[28:29]")
    a("s_or_b64 vcc, vcc, s[38:39]")
    a("v_cmp_ne_u64 s[38:39], s[60:61], v[30:31]")
    a("s_or_b64 vcc, vcc, s[38:39]")
    a("s_cbranch_vccz L_poll_af_ok")
    a("s_sub_u32 s62, s62, 1")
    a("s_cmp_gt_i32 s62, 0")
    a("s_cbranch_scc1 L_poll_af")
    a.label("L_poll_af_ok")
    a("s_cmp_lg_u32 s2, 0")
    a("s_cbranch_scc1 L_noepoch")
    a("v_mov_b32 v6, 0")
    a("s_mov_b64 exec, 1")
    a("global_store_dwordx2 v6, v[16:17], s[28:29] sc1")
    a("s_mov_b64 exec, -1")
    a.label("L_noepoch")
    stamp()
    a("s_barrier")
    stamp()
    a.label("L_poll_p")
    for i in range(4):
        a(f"global_load_dwordx4 v[{24+4*i}:{27+4*i}], v12, s[28:29] offset:{1024*i} sc1")
    a("s_waitcnt vmcnt(0)")
    a("v_max3_u32 v40, v24, v25, v26")
    for i in range(3, 16, 2):
        if i + 1 < 16:
            a(f"v_max3_u32 v40, v40, v{24+i}, v{25+i}")
        else:
            a(f"v_max_u32 v40, v40, v{24+i}")
    a("v_cmp_eq_u32 vcc, -1, v40")
    a("s_cbranch_vccz L_poll_p_ok")
    a("s_sub_u32 s62, s62, 1")
    a("s_cmp_gt_i32 s62, 0")
    a("s_cbranch_scc1 L_poll_p")
    a.label("L_poll_p_ok")
    stamp()
    for i in range(4):
        a(f"v_add_f32 v{24+i}, v{24+i}, v{28+i}")
        a(f"v_add_f32 v{32+i}, v{32+i}, v{36+i}")
    for i in range(4):
        a(f"v_add_f32 v{24+i}, v{24+i}, v{32+i}")

    def red4():
        a("v_permlane32_swap_b32 v24, v26")
        a("v_permlane32_swap_b32 v25, v27")
        a("v_add_f32 v24, v24, v26")
        a("v_add_f32 v25, v25, v27")
        a("v_permlane16_swap_b32 v24, v25")
        a("v_add_f32 v24, v24, v25")
        for n in (1, 2, 4, 8):
            a(f"v_add_f32_dpp v24, v24, v24 row_ror:{n} {DPPM}")

    def pack4(src):
        for h in range(4):
            a(f"v_readlane_b32 s{52+h}, v{src}, {16*h}")
        a("s_pack_hh_b32_b16 s38, s52, s53")
        a("s_pack_hh_b32_b16 s39, s54, s55")

    red4()
    a("v_cvt_pk_bf16_f32 v24, v24, v24")
    a("v_lshlrev_b32 v24, 16, v24")
    a("v_add_f32 v24, v24, v20")
    a("v_cvt_pk_bf16_f32 v24, v24, v24")
    a("v_lshlrev_b32 v22, 16, v24")
    pack4(22)
    a("s_min_u32 s38, s38, -2")
    a("s_min_u32 s39, s39, -2")
    a("v_mov_b32 v24, s38")
    a("v_mov_b32 v25, s39")
    a("s_mov_b64 exec, 1")
    a("global_store_dwordx2 v14, v[24:25], s[28:29] sc1")
    a("s_mov_b64 exec, -1")
    stamp()
    a(f"s_cmp_ge_u32 s2, {NMLP}")
    a("s_cbranch_scc1 L_nob4")
    a("s_barrier")
    a.label("L_nob4")
    for i in range(4):
        a(f"v_mov_b32 v{24+i}, 0")
    a("s_mov_b32 s38, -1")
    a("s_mov_b32 s39, 0x%08x" % ((1 << (NMLP - 32)) - 1))
    a("s_mov_b64 exec, s[38:39]")
    a.label("L_poll_y")
    a("global_load_dwordx4 v[24:27], v13, s[28:29] sc1")
    a("s_waitcnt vmcnt(0)")
    a("v_max3_u32 v40, v24, v25, v26")
    a("v_max_u32 v40, v40, v27")
    a("v_cmp_eq_u32 vcc, -1, v40")
    a("s_cbranch_vccz L_poll_y_ok")
    a("s_sub_u32 s62, s62, 1")
    a("s_cmp_gt_i32 s62, 0")
    a("s_cbranch_scc1 L_poll_y")
    a.label("L_poll_y_ok")
    a("s_mov_b64 exec, -1")
    stamp()
    red4()
    a("v_cvt_pk_bf16_f32 v24, v24, v24")
    a("v_lshlrev_b32 v24, 16, v24")
    a("v_add_f32 v24, v24, v21")
    a("v_cvt_pk_bf16_f32 v24, v24, v24")
    a("v_lshlrev_b32 v24, 16, v24")
    a("v_add_f32 v24, v24, v22")
    a("v_cvt_pk_bf16_f32 v24, v24, v24")
    a("v_lshlrev_b32 v24, 16, v24")
    pack4(24)
    a("v_mov_b32 v24, s38")
    a("v_mov_b32 v25, s39")
    a("s_lshl_b32 s36, s2, 3")
    a("v_mov_b32 v6, s36")
    a("s_mov_b64 exec, 1")
    a("global_store_dwordx2 v6, v[24:25], s[24:25]")
    a("s_mov_b64 exec, -1")
    stamp()
    stamp_dump(14)
    a.label("L_end")
    a("s_endpgm")

    R('.section .rodata,"a"')
    R(".p2align 6")
    R(f".amdhsa_kernel {NAME}_kernel")
    R("  .amdhsa_next_free_vgpr 168")
    R("  .amdhsa_next_free_sgpr 102")
    R("  .amdhsa_accum_offset 168")
    R("  .amdhsa_group_segment_fixed_size 0")
    R("  .amdhsa_kernarg_size 104")
    R("  .amdhsa_user_sgpr_count 2")
    R("  .amdhsa_user_sgpr_kernarg_segment_ptr 1")
    R("  .amdhsa_system_sgpr_workgroup_id_x 1")
    R("  .amdhsa_float_denorm_mode_32 3")
    R(".end_amdhsa_kernel")
    return a.text()


if __name__ == "__main__":
    out = sys.argv[1] if len(sys.argv) > 1 else "k.s"
    stamps = len(sys.argv) > 2 and sys.argv[2] == "stamps"
    open(out, "w").write(gen(stamps))
```

```python
import re

TRANS = ("v_exp_f32", "v_log_f32", "v_rcp_f32", "v_rsq_f32", "v_sqrt_f32", "v_sin_f32", "v_cos_f32")
_reg_re = re.compile(r"\b([vsa])\[(\d+):(\d+)\]|\b([vsa])(\d+)\b|\b(vcc|exec)\b")


def regs_of(op):
    out = set()
    for m in _reg_re.finditer(op):
        if m.group(1):
            for i in range(int(m.group(2)), int(m.group(3)) + 1):
                out.add(m.group(1) + str(i))
        elif m.group(4):
            out.add(m.group(4) + m.group(5))
        else:
            out.add(m.group(6))
    return out


class Ins:
    def __init__(self, text):
        self.text = text
        t = text.split(";")[0].strip()
        self.mn = t.split()[0] if t else ""
        rest = t[len(self.mn):].strip()
        ops, depth, cur = [], 0, ""
        for ch in rest:
            if ch == "[":
                depth += 1
            if ch == "]":
                depth -= 1
            if ch == "," and depth == 0:
                ops.append(cur.strip())
                cur = ""
            else:
                cur += ch
        if cur.strip():
            ops.append(cur.strip())
        self.mods = ""
        if ops:
            parts = ops[-1].split(None, 1)
            ops[-1] = parts[0]
            if len(parts) > 1:
                self.mods = parts[1]
        self.ops = ops
        mn = self.mn
        self.is_valu = mn.startswith("v_")
        self.is_mfma = mn.startswith("v_mfma")
        self.is_dot = mn.startswith("v_dot")
        self.is_trans = any(mn.startswith(x) for x in TRANS)
        self.is_dpp = "_dpp" in mn
        self.is_permlane = mn.startswith("v_permlane")
        self.is_readlane = mn.startswith("v_readlane") or mn.startswith("v_readfirstlane")
        self.is_vmem = mn.startswith(("global_", "buffer_", "flat_"))
        self.is_ds = mn.startswith("ds_")
        self.is_store = self.is_vmem and ("store" in mn or "atomic" in mn)
        self.is_salu = mn.startswith("s_")
        self.w, self.r = set(), set()
        if self.is_valu:
            if self.is_permlane:
                self.w = regs_of(ops[0]) | regs_of(ops[1])
                self.r = set(self.w)
            else:
                self.w = regs_of(ops[0])
                for o in ops[1:]:
                    self.r |= regs_of(o)
                if mn.startswith(("v_fmac", "v_dot2c", "v_pk_fmac")):
                    self.r |= self.w
                if self.is_dpp:
                    self.r |= self.w
                if mn.startswith(("v_add_co", "v_sub_co", "v_addc_co", "v_subb_co")):
                    self.w |= regs_of(ops[1])
                if mn.startswith("v_cndmask") and len(ops) == 3:
                    self.r.add("vcc")
        elif self.is_vmem or self.is_ds:
            isload = ("load" in mn) or mn.startswith(("ds_read", "ds_bpermute", "ds_permute", "ds_swizzle"))
            if isload:
                self.w = regs_of(ops[0])
                for o in ops[1:]:
                    self.r |= regs_of(o)
            else:
                for o in ops:
                    self.r |= regs_of(o)
        self.passes = 0
        if self.is_mfma:
            self.passes = 8 if "32x32" in mn else 4
            self.srcc = regs_of(ops[3])
            self.srcab = regs_of(ops[1]) | regs_of(ops[2])
        self.wide_store_data = set()
        if self.is_store and ("x4" in mn or "x3" in mn):
            self.wide_store_data = regs_of(ops[1]) if mn.startswith("global") else regs_of(ops[0])

    def states(self):
        if self.mn == "s_nop":
            return int(self.ops[0]) + 1
        return 1


def need(prev, cur):
    n = 0
    pv = {x for x in prev.w if x[0] in "va" and x not in ("vcc",)}
    ps = {x for x in prev.w if x[0] == "s" or x == "vcc"}
    if prev.is_mfma:
        P = prev.passes
        big = {4: 8, 8: 12}[P]
        if cur.is_mfma:
            if cur.srcab & pv:
                n = max(n, big)
            if cur.srcc & pv and not (cur.srcc == prev.w and cur.passes == prev.passes):
                n = max(n, {4: 6, 8: 10}[P])
        else:
            if (cur.r | cur.w) & pv:
                n = max(n, big)
            if cur.is_valu and (cur.w & prev.srcc):
                n = max(n, {4: 3, 8: 7}[P])
        return n
    if prev.is_valu:
        if pv & cur.r:
            if cur.is_dpp or cur.is_permlane or cur.is_mfma:
                n = max(n, 2)
            if cur.is_readlane:
                n = max(n, 1)
            if prev.is_trans and not cur.is_trans:
                n = max(n, 1)
        if prev.is_dot and (pv & (cur.r | cur.w)):
            same = cur.mn == prev.mn
            if same:
                ab = regs_of(cur.ops[1]) | regs_of(cur.ops[2])
                if pv & ab:
                    n = max(n, 3)
            else:
                n = max(n, 3)
        if ps & cur.r:
            if cur.is_valu:
                n = max(n, 4 if (cur.mn.startswith("v_readlane") or cur.mn.startswith("v_writelane")) else 2)
            if cur.is_vmem:
                n = max(n, 5)
    if prev.wide_store_data and (prev.wide_store_data & cur.w):
        n = max(n, 2)
    return n


class Asm:
    def __init__(self):
        self.lines = []
        self.hist = []
        self.nlabel = 0

    def raw(self, s):
        self.lines.append(s)

    def label(self, name, flush=True):
        if flush:
            self.pad_all()
        self.lines.append(name + ":")

    def pad_all(self, credit=0):
        req = 0
        dist = credit
        for p in reversed(self.hist):
            if p.is_mfma:
                req = max(req, {4: 8, 8: 12}[p.passes] - dist)
            elif p.is_valu:
                m = 2
                if p.is_dot:
                    m = 3
                if any(x[0] == "s" for x in p.w):
                    m = 5
                req = max(req, m - dist)
            elif p.wide_store_data:
                req = max(req, 2 - dist)
            dist += p.states()
            if dist > 16:
                break
        if req > 0:
            self._nop(req)
        self.hist = []

    def _nop(self, n):
        while n > 0:
            k = min(n, 8)
            i = Ins(f"s_nop {k-1}")
            self.lines.append("    " + i.text)
            self.hist.append(i)
            n -= k

    def __call__(self, text):
        for t in text.strip().split("\n"):
            t = t.strip()
            if not t:
                continue
            if t.startswith(";"):
                self.lines.append("    " + t)
                continue
            cur = Ins(t)
            dist = 0
            req = 0
            for p in reversed(self.hist):
                k = need(p, cur)
                if k > dist:
                    req = max(req, k - dist)
                dist += p.states()
                if dist > 16:
                    break
            if req > 0:
                self._nop(req)
            if cur.mn.startswith(("s_cbranch", "s_branch")):
                self.pad_all(credit=1)
            self.lines.append("    " + t)
            self.hist.append(cur)
            if len(self.hist) > 40:
                self.hist = self.hist[-40:]

    def newlabel(self, base="L"):
        self.nlabel += 1
        return f"{base}_{self.nlabel}"

    def text(self):
        return "\n".join(self.lines) + "\n"
```

```python
import sys
from asmlib import Asm

NAME = "sequential_preLN__sliding_block_cached__dense_activation_gelu__decode"

EPOCH = 0
FLAGS = 32768
QBUF = 262144
MLBUF = 131072
HBUF = 196608
OBUF = 1 << 20
PBUF = OBUF + (512 << 10)
YBUF = OBUF + (768 << 10)
STAMP = 8 << 20

L_P1 = 0
L_Q = 1024
L_MX = 2048
L_LS = 2112
L_SY = 2176
SY_Q, SY_MX, SY_P, SY_O, SY_KI, SY_XN, SY_QP = 0, 4, 8, 12, 20, 24, 28
L_HL = 2304
L_HN = 4352
L_OL = 6400
L_P = L_OL + 8 * 2304
L_TOTAL = L_P + 2048

NMLP = 112
RED0 = 224
LOG2E = 0x3FB8AA3B
SCALE = 0x3DB504F3
DPPM = "row_mask:0xf bank_mask:0xf"


def gen(stamps=False, K0=8, VA=8, NSET=1, psl=0, RS=2, rsl=1, pdelay=1):
    nt = " nt"
    a = Asm()
    R = a.raw
    R(f"; @launch grid=(256,1,1) block=(576,1,1) lds={L_TOTAL}")
    R('.amdgcn_target "amdgcn-amd-amdhsa--gfx950"')
    R(".text")
    R(f".globl {NAME}_kernel")
    R(".p2align 8")
    R(f".type {NAME}_kernel,@function")
    R(f"{NAME}_kernel:")

    def stamp(i):
        if stamps:
            a(f"s_memrealtime s[{70+2*i}:{71+2*i}]")

    def stamp_dump(n):
        if not stamps:
            return
        a("s_waitcnt lgkmcnt(0)")
        a("s_lshl_b32 s36, s2, 4")
        a("s_add_u32 s36, s36, s3")
        a("s_lshl_b32 s36, s36, 6")
        a(f"s_add_u32 s36, s36, {STAMP}")
        a("v_mov_b32 v2, s36")
        a("s_mov_b64 exec, 1")
        for i in range(n):
            a(f"v_mov_b32 v3, s{70+2*i}")
            a(f"global_store_dword v2, v3, s[28:29] offset:{4*i}")
        a("s_mov_b64 exec, -1")

    def poll_end(lab):
        a(f"s_cbranch_vccz {lab}_ok")
        a("s_sub_u32 s62, s62, 1")
        a("s_cmp_gt_i32 s62, 0")
        a(f"s_cbranch_scc1 {lab}")
        a.label(f"{lab}_ok")

    def check_sentinel(base, n, ck):
        a(f"v_max3_u32 v{ck}, v{base}, v{base+1}, v{base+2}")
        i = 3
        while i < n:
            if i + 1 < n:
                a(f"v_max3_u32 v{ck}, v{ck}, v{base+i}, v{base+i+1}")
            else:
                a(f"v_max_u32 v{ck}, v{ck}, v{base+i}")
            i += 2
        a(f"v_cmp_eq_u32 vcc, -1, v{ck}")

    def masked_poll(name, loads, ck):
        n = len(loads)
        a(f"s_mov_b32 s58, {(1 << n) - 1}")
        a.label(name)
        for i, (txt, base, nr) in enumerate(loads):
            a(f"s_bitcmp0_b32 s58, {i}")
            a(f"s_cbranch_scc1 {name}_s{i}")
            a(txt)
            a.label(f"{name}_s{i}", flush=False)
        a("s_waitcnt vmcnt(0)")
        for i, (txt, base, nr) in enumerate(loads):
            a(f"s_bitcmp0_b32 s58, {i}")
            a(f"s_cbranch_scc1 {name}_c{i}")
            if nr == 4:
                a(f"v_max3_u32 v{ck}, v{base}, v{base+1}, v{base+2}")
                a(f"v_max_u32 v{ck}, v{ck}, v{base+3}")
            else:
                a(f"v_max_u32 v{ck}, v{base}, v{base+1}")
            a(f"v_cmp_eq_u32 vcc, -1, v{ck}")
            a.raw(f"    s_cbranch_vccnz {name}_c{i}")
            a(f"s_bitset0_b32 s58, {i}")
            a.label(f"{name}_c{i}", flush=False)
        a("s_cmp_eq_u32 s58, 0")
        a(f"s_cbranch_scc1 {name}_ok")
        a("s_sub_u32 s62, s62, 1")
        a("s_cmp_gt_i32 s62, 0")
        a(f"s_cbranch_scc1 {name}")
        a.label(f"{name}_ok")

    def lds_spin(off, n, vt):
        lab = a.newlabel("Lspin")
        a.label(lab)
        a(f"ds_read_b32 v{vt}, v11 offset:{L_SY+off}")
        a("s_waitcnt lgkmcnt(0)")
        a(f"v_readfirstlane_b32 s38, v{vt}")
        a(f"s_cmp_lt_u32 s38, {n}")
        a(f"s_cbranch_scc1 {lab}")

    def lds_inc(off):
        a("s_mov_b64 exec, 1")
        a(f"ds_add_u32 v11, v10 offset:{L_SY+off}")
        a("s_mov_b64 exec, -1")

    def ln_scalars(var, mean, t0, t1, t2):
        a(f"v_cvt_pk_bf16_f32 v{t0}, v{var}, v{mean}")
        a(f"v_and_b32 v{mean}, 0xffff0000, v{t0}")
        a(f"v_lshlrev_b32 v{t0}, 16, v{t0}")
        a(f"v_add_f32 v{t0}, 0x3727c5ac, v{t0}")
        a(f"v_cvt_pk_bf16_f32 v{t0}, v{t0}, v{t0}")
        a(f"v_lshlrev_b32 v{t0}, 16, v{t0}")
        a(f"v_sqrt_f32 v{t1}, v{t0}")
        a(f"v_rcp_f32 v{t2}, v{t1}")
        a(f"v_fma_f32 v{t0}, -v{t1}, v{t1}, v{t0}")
        a(f"v_mul_f32 v{t2}, 0.5, v{t2}")
        a(f"v_fmac_f32 v{t1}, v{t0}, v{t2}")
        a(f"v_cvt_pk_bf16_f32 v{t1}, v{t1}, v{t1}")
        a(f"v_lshlrev_b32 v{t1}, 16, v{t1}")
        a(f"v_rcp_f32 v{t2}, v{t1}")
        a(f"v_fma_f32 v{t0}, -v{t1}, v{t2}, 1.0")
        a(f"v_fmac_f32 v{t2}, v{t0}, v{t2}")

    def layernorm(H0, exact):
        G = 48
        G2 = 64

        def unpack(u):
            a(f"v_lshlrev_b32 v{G+2*u}, 16, v{H0+u}")
            a(f"v_and_b32 v{G+2*u+1}, 0xffff0000, v{H0+u}")

        if not exact:
            a(f"v_dot2_f32_bf16 v40, v{H0}, s36, 0")
            a(f"v_dot2_f32_bf16 v41, v{H0}, v{H0}, 0")
            for u in range(1, 8):
                a(f"v_dot2_f32_bf16 v40, v{H0+u}, s36, v40")
                a(f"v_dot2_f32_bf16 v41, v{H0+u}, v{H0+u}, v41")
            unpack(0)
            unpack(1)
            a("v_permlane16_swap_b32 v40, v41")
            a("v_add_f32 v40, v40, v41")
            uu = 2
            for n in (1, 2, 4, 8):
                unpack(uu)
                uu += 1
                a(f"v_add_f32_dpp v40, v40, v40 row_ror:{n} {DPPM}")
            a("v_mov_b32 v41, v40")
            unpack(6)
            unpack(7)
            a("v_permlane16_swap_b32 v40, v41")
            a("v_mul_f32 v40, 0x3b000000, v40")
            a("v_mul_f32 v41, 0x3b000000, v41")
            a("v_fma_f32 v41, -v40, v40, v41")
            a("v_max_f32 v41, 0, v41")
        else:
            def red32(r, u):
                a(f"v_mov_b32 v{u}, v{r}")
                a(f"v_permlane16_swap_b32 v{r}, v{u}")
                a(f"v_add_f32 v{r}, v{r}, v{u}")
                for n in (1, 2, 4, 8):
                    a(f"v_add_f32_dpp v{r}, v{r}, v{r} row_ror:{n} {DPPM}")
            a(f"v_dot2_f32_bf16 v40, v{H0}, s36, 0")
            for u in range(1, 8):
                a(f"v_dot2_f32_bf16 v40, v{H0+u}, s36, v40")
            for u in range(8):
                unpack(u)
            red32(40, 41)
            a("v_mul_f32 v40, 0x3b000000, v40")
            a("v_sub_f32 v42, 0, v40")
            a("v_mov_b32 v43, v42")
            for u in range(8):
                a(f"v_pk_add_f32 v[{G2+2*u}:{G2+2*u+1}], v[{G+2*u}:{G+2*u+1}], v[42:43]")
            a(f"v_pk_mul_f32 v[42:43], v[{G2}:{G2+1}], v[{G2}:{G2+1}]")
            for u in range(1, 8):
                a(f"v_pk_fma_f32 v[42:43], v[{G2+2*u}:{G2+2*u+1}], v[{G2+2*u}:{G2+2*u+1}], v[42:43]")
            a("v_add_f32 v41, v42, v43")
            red32(41, 42)
            a("v_mul_f32 v41, 0x3b000000, v41")
        ln_scalars(41, 40, 42, 43, 44)
        a("v_sub_f32 v40, 0, v40")
        a("v_mov_b32 v41, v40")
        a("v_mov_b32 v45, v44")
        for u in range(8):
            a(f"v_pk_add_f32 v[{G+2*u}:{G+2*u+1}], v[{G+2*u}:{G+2*u+1}], v[40:41]")
        for u in range(8):
            a(f"v_cvt_pk_bf16_f32 v{H0+u}, v{G+2*u}, v{G+2*u+1}")
        for u in range(8):
            unpack(u)
        if not exact:
            for u in range(8):
                a(f"v_pk_mul_f32 v[{G+2*u}:{G+2*u+1}], v[{G+2*u}:{G+2*u+1}], v[44:45]")
            for u in range(8):
                a(f"v_cvt_pk_bf16_f32 v{H0+u}, v{G+2*u}, v{G+2*u+1}")
        else:
            a("v_sub_f32 v42, 0, v43")
            a("v_mov_b32 v43, v42")
            for u in range(8):
                a(f"v_pk_mul_f32 v[{G2+2*u}:{G2+2*u+1}], v[{G+2*u}:{G+2*u+1}], v[44:45]")
            for u in range(8):
                a(f"v_pk_fma_f32 v[{G+2*u}:{G+2*u+1}], v[{G2+2*u}:{G2+2*u+1}], v[42:43], v[{G+2*u}:{G+2*u+1}]")
            for u in range(8):
                a(f"v_pk_fma_f32 v[{G2+2*u}:{G2+2*u+1}], v[{G+2*u}:{G+2*u+1}], v[44:45], v[{G2+2*u}:{G2+2*u+1}]")
            for u in range(8):
                a(f"v_cvt_pk_bf16_f32 v{H0+u}, v{G2+2*u}, v{G2+2*u+1}")

    stamp(0)
    a("s_cmp_ge_u32 s2, 256")
    a("s_cbranch_scc1 L_end")
    a("s_load_dwordx16 s[4:19], s[0:1], 0")
    a("s_load_dwordx8 s[20:27], s[0:1], 64")
    a("s_load_dwordx2 s[28:29], s[0:1], 96")
    a("v_lshrrev_b32 v1, 6, v0")
    a("v_readfirstlane_b32 s3, v1")
    a("v_and_b32 v1, 63, v0")
    a("s_and_b32 s30, s2, 7")
    a("s_lshr_b32 s31, s2, 3")
    a("s_lshr_b32 s32, s31, 4")
    a("s_and_b32 s33, s31, 15")
    a("s_lshr_b32 s34, s31, 1")
    a("s_mul_i32 s35, s30, 14")
    a("s_add_u32 s35, s35, s34")
    a("s_and_b32 s55, s31, 1")
    a("s_cmp_ge_u32 s34, 14")
    a("s_cselect_b32 s36, 2, 1")
    a("s_mul_i32 s55, s55, s36")
    a("s_cmp_ge_u32 s31, 24")
    a("s_cselect_b32 s56, 1, 0")
    a("s_cmp_eq_u32 s55, 0")
    a("s_cselect_b32 s56, s56, 0")
    a("s_and_b32 s57, s34, 3")
    a("s_lshl_b32 s57, s57, 3")
    a("s_add_u32 s57, s57, s30")
    a("s_mov_b32 s62, 100000")
    a("s_mov_b32 s40, 0x05040100")
    a("s_mov_b32 s41, 0x07060302")
    a("v_and_b32 v4, 15, v1")
    a("v_lshrrev_b32 v5, 4, v1")
    a("v_lshlrev_b32 v2, 4, v1")
    for i in range(4):
        a(f"v_mov_b32 v{12+i}, -1")
    a("v_mov_b32 v10, 1")
    a("v_mov_b32 v11, 0")
    a("s_cmp_eq_u32 s3, 0")
    a("s_cbranch_scc1 L_comm")
    a("s_sub_u32 s3, s3, 1")
    a("v_subrev_u32 v0, 64, v0")

    KV = 28
    WO = 60
    W1 = 76
    WQ = 76
    W2 = 84
    FR = 100
    B1 = 7
    T = 120

    a("v_lshrrev_b32 v3, 3, v0")
    a("s_lshr_b32 s38, s31, 3")
    a("s_lshl_b32 s36, s38, 6")
    a("v_add_lshl_u32 v16, v3, s36, 2")
    a("v_lshlrev_b32 v3, 14, v3")
    a("v_and_b32 v6, 7, v0")
    a("v_lshl_add_u32 v3, v6, 4, v3")
    a("s_lshl_b32 s36, s30, 10")
    a("s_and_b32 s37, s31, 7")
    a("s_lshl_b32 s37, s37, 7")
    a("s_add_u32 s36, s36, s37")
    a("s_lshl_b32 s37, s38, 20")
    a("s_add_u32 s36, s36, s37")
    a("v_add_u32 v3, s36, v3")
    a("v_add_u32 v6, 8192, v3")
    a("v_and_b32 v8, 3, v1")
    a("s_lshl_b32 s36, s30, 1")
    a("s_add_u32 s36, s36, s32")
    a("s_lshl_b32 s36, s36, 3")
    a("s_add_u32 s36, s36, s3")
    a("s_lshl_b32 s36, s36, 4")
    a("s_add_u32 s36, s36, s33")
    a("s_lshl_b32 s36, s36, 8")
    a(f"s_add_u32 s36, s36, {OBUF}")
    a("v_lshlrev_b32 v21, 6, v8")
    a("v_lshl_add_u32 v21, v5, 4, v21")
    a("v_add_u32 v21, s36, v21")
    a("s_lshr_b32 s51, s31, 2")
    a("s_and_b32 s52, s34, 1")
    a("s_and_b32 s53, s3, 3")
    a("s_lshr_b32 s50, s3, 2")
    a("s_lshl_b32 s36, s32, 3")
    a("s_add_u32 s36, s36, s30")
    a("s_lshl_b32 s36, s36, 21")
    a("s_lshl_b32 s37, s33, 15")
    a("s_add_u32 s36, s36, s37")
    a("s_lshl_b32 s37, s53, 13")
    a("s_add_u32 s36, s36, s37")
    a("s_add_u32 s54, s36, 0x180000")
    a("s_waitcnt lgkmcnt(0)")
    a(f"global_load_dwordx4 v[{WQ}:{WQ+3}], v3, s[10:11]{nt}")
    a(f"global_load_dwordx4 v[{WQ+4}:{WQ+7}], v6, s[10:11]{nt}")
    a("s_mov_b32 exec_lo, 0x000f000f")
    a("s_mov_b32 exec_hi, 0x000f000f")
    a("global_store_dwordx4 v21, v[12:15], s[28:29] sc1")
    a("s_mov_b64 exec, -1")
    a("s_cmp_eq_u32 s56, 0")
    a("s_cbranch_scc1 L_noredclr")
    a("s_mov_b32 s38, s57")
    a("s_lshl_b32 s36, s38, 13")
    a("s_lshl_b32 s37, s3, 10")
    a("s_add_u32 s36, s36, s37")
    a(f"s_add_u32 s36, s36, {PBUF}")
    a("v_add_u32 v3, s36, v2")
    a("global_store_dwordx4 v3, v[12:15], s[28:29] sc1")
    a("s_lshl_b32 s36, s38, 14")
    a("s_lshl_b32 s37, s3, 11")
    a("s_add_u32 s36, s36, s37")
    a(f"s_add_u32 s36, s36, {YBUF}")
    a("v_add_u32 v3, s36, v2")
    a("global_store_dwordx4 v3, v[12:15], s[28:29] sc1")
    a("global_store_dwordx4 v3, v[12:15], s[28:29] offset:1024 sc1")
    a.label("L_noredclr")
    a("s_barrier")
    a("s_cmp_eq_u32 s50, 0")
    a("s_cbranch_scc0 L_v_addr")
    a("v_lshlrev_b32 v8, 10, v8")
    a("v_bfe_u32 v9, v1, 2, 2")
    a("v_lshl_add_u32 v8, v9, 8, v8")
    a("v_lshl_add_u32 v8, v5, 4, v8")
    a("v_add_u32 v8, s54, v8")
    a("v_add_u32 v9, 4096, v8")

    def ldk(i):
        t, s = i >> 2, i & 3
        a(f"global_load_dwordx4 v[{KV+4*i}:{KV+4*i+3}], v{8+t}, s[6:7] offset:{64*s}{nt}")

    def ldv(e):
        a(f"global_load_dwordx4 v[{KV+4*e}:{KV+4*e+3}], v{8+(e>>2)}, s[8:9] offset:{1024*(e&3)}{nt}")

    for i in range(K0):
        ldk(i)
    a("s_branch L_ln1")
    a.label("L_v_addr")
    a("v_add_u32 v8, s54, v2")
    a("v_add_u32 v9, 4096, v8")
    a.label("L_ln1")
    stamp(1)
    a("v_lshrrev_b32 v6, 1, v5")
    a("v_lshlrev_b32 v6, 8, v6")
    a("v_and_b32 v3, 1, v5")
    a("v_lshl_add_u32 v6, v3, 4, v6")
    a("v_and_b32 v3, 7, v1")
    a("v_lshl_add_u32 v6, v3, 5, v6")
    a("s_lshl_b32 s36, s3, 9")
    a("v_add_u32 v6, s36, v6")
    lds_spin(SY_XN, 1, T)
    XN = T + 24
    assert L_HN % 256 == 0
    a(f"ds_read2st64_b32 v[{XN}:{XN+1}], v16 offset0:{L_HN//256} offset1:{L_HN//256+4}")
    a("s_cmp_eq_u32 s50, 0")
    a("s_cbranch_scc1 L_kw1")
    a("s_waitcnt vmcnt(0)")
    a("s_branch L_p1")
    a.label("L_kw1")
    a(f"s_waitcnt vmcnt({K0})")
    a.label("L_p1")
    stamp(2)
    ACC = T
    WF = T + 16
    for u in range(4):
        a(f"v_perm_b32 v{WF+2*u}, v{WQ+4+u}, v{WQ+u}, s40")
        a(f"v_perm_b32 v{WF+2*u+1}, v{WQ+4+u}, v{WQ+u}, s41")
    a("s_waitcnt lgkmcnt(0)")
    for b in range(2):
        for c in range(8):
            a(f"v_dot2_f32_bf16 v{ACC+b*8+c}, v{WF+c}, v{XN+b}, 0")
    for e in range(8):
        a(f"v_permlane32_swap_b32 v{ACC+e}, v{ACC+8+e}")
    for e in range(4):
        a(f"v_pk_add_f32 v[{ACC+2*e}:{ACC+2*e+1}], v[{ACC+2*e}:{ACC+2*e+1}], v[{ACC+8+2*e}:{ACC+8+2*e+1}]")
    for e in range(4):
        a(f"v_permlane16_swap_b32 v{ACC+e}, v{ACC+4+e}")
    for e in range(2):
        a(f"v_pk_add_f32 v[{ACC+2*e}:{ACC+2*e+1}], v[{ACC+2*e}:{ACC+2*e+1}], v[{ACC+4+2*e}:{ACC+4+2*e+1}]")
    for e in range(4):
        a(f"v_add_f32_dpp v{ACC+e}, v{ACC+e}, v{ACC+e} row_ror:8 {DPPM}")
    a("s_mov_b32 exec_lo, 0x00ff00ff")
    a("s_mov_b32 exec_hi, 0x00ff00ff")
    a(f"ds_write_b128 v6, v[{ACC}:{ACC+3}] offset:{L_OL}")
    a("s_mov_b64 exec, -1")
    a("s_waitcnt lgkmcnt(0)")
    a("s_barrier")
    stamp(3)
    lds_spin(SY_QP, 1, T)

    def common_addrs():
        a("v_and_b32 v3, 3, v1")
        a("v_lshrrev_b32 v15, 5, v0")
        a("v_mul_u32_u24 v15, 144, v15")
        a("v_and_b32 v6, 31, v0")
        a("v_lshl_add_u32 v15, v6, 2, v15")
        a("v_lshlrev_b32 v13, 6, v4")
        a("v_and_b32 v13, 0x1c0, v13")
        a("v_lshl_add_u32 v13, v5, 4, v13")
        a("s_lshl_b32 s38, s53, 9")
        a("v_add_u32 v13, s38, v13")
        a("s_mov_b32 s36, 0x%08x" % SCALE)
        a("s_mov_b32 s37, 0x%08x" % LOG2E)

    def weight_loads():
        le = a.newlabel("Lwe")
        a("s_cmp_lg_u32 s55, 0")
        a(f"s_cbranch_scc1 {le}")
        a("s_lshl_b32 s44, s30, 19")
        a("s_lshl_b32 s45, s51, 14")
        a("s_add_u32 s44, s44, s45")
        a("s_lshl_b32 s45, s52, 9")
        a("s_add_u32 s44, s44, s45")
        a("s_lshl_b32 s45, s3, 6")
        a("s_add_u32 s44, s44, s45")
        a("v_lshlrev_b32 v20, 17, v5")
        a("v_bfe_u32 v16, v1, 2, 2")
        a("v_lshl_add_u32 v20, v16, 12, v20")
        a("v_and_b32 v16, 3, v1")
        a("v_lshl_add_u32 v20, v16, 4, v20")
        a("v_add_u32 v20, s44, v20")
        for e in range(4):
            a(f"global_load_dwordx4 v[{WO+4*e}:{WO+4*e+3}], v20, s[12:13] offset:{1024*e}{nt}")
        a.label(le)

    def mlp_loads():
        a("s_mul_i32 s44, s3, 229376")
        a("s_lshl_b32 s45, s35, 5")
        a("s_add_u32 s44, s44, s45")
        a("v_lshrrev_b32 v16, 3, v4")
        a("v_lshl_add_u32 v20, v16, 2, v5")
        a("v_mul_u32_u24 v20, 28672, v20")
        a("v_and_b32 v16, 7, v4")
        a("v_lshl_add_u32 v20, v16, 2, v20")
        a("v_add_u32 v20, s44, v20")
        for e in range(8):
            off = e * 3584
            if off < 4096:
                a(f"global_load_dword v{W1+e}, v20, s[16:17] offset:{off}{nt}")
            else:
                a(f"v_add_u32 v16, {off}, v20")
                a(f"global_load_dword v{W1+e}, v16, s[16:17]{nt}")
        a("s_lshl_b32 s44, s35, 14")
        a("s_lshl_b32 s45, s3, 7")
        a("s_add_u32 s44, s44, s45")
        a("v_lshrrev_b32 v20, 3, v1")
        a("v_lshlrev_b32 v20, 11, v20")
        a("v_and_b32 v16, 7, v1")
        a("v_lshl_add_u32 v20, v16, 4, v20")
        a("v_add_u32 v20, s44, v20")
        for e in range(2):
            a(f"global_load_dwordx4 v[{W2+4*e}:{W2+4*e+3}], v20, s[20:21] offset:{1024*e}{nt}")
        a("v_lshrrev_b32 v16, 3, v1")
        a("v_bfe_u32 v17, v1, 1, 1")
        a("v_lshl_add_u32 v16, v16, 1, v17")
        a("s_lshl_b32 s44, s35, 4")
        a("v_add_lshl_u32 v17, v16, s44, 1")
        a(f"global_load_ushort v{B1}, v17, s[18:19]")

    def sum8(dst, base):
        a(f"v_add_f32 v{dst}, v{base}, v{base+1}")
        for i in range(2, 8):
            a(f"v_add_f32 v{dst}, v{dst}, v{base+i}")

    a("s_cmp_eq_u32 s50, 0")
    a("s_cbranch_scc0 L_vwave")
    for i in range(K0, 8):
        ldk(i)
    common_addrs()
    a("v_and_b32 v6, 3, v4")
    a("v_lshlrev_b32 v12, 4, v6")
    a("s_lshl_b32 s38, s53, 2")
    a("v_add_u32 v14, s38, v12")
    a("v_lshlrev_b32 v6, 8, v6")
    a("v_lshl_add_u32 v6, v5, 4, v6")
    a("v_and_b32 v3, 4, v4")
    a("v_cmp_ne_u32 s[42:43], 0, v3")
    a("s_waitcnt vmcnt(0)")
    stamp(4)
    lds_spin(SY_Q, 1, T)
    stamp(5)
    Q = T
    for s in range(4):
        a(f"ds_read_b128 v[{Q+4*s}:{Q+4*s+3}], v6 offset:{L_Q+64*s}")
    SA = T + 16
    for s in range(4):
        a(f"s_waitcnt lgkmcnt({3-s})")
        for t in range(2):
            c = "0" if s == 0 else f"v[{SA+4*t}:{SA+4*t+3}]"
            k = KV + 16 * t + 4 * s
            a(f"v_mfma_f32_16x16x32_bf16 v[{SA+4*t}:{SA+4*t+3}], v[{k}:{k+3}], v[{Q+4*s}:{Q+4*s+3}], {c}")
    Z = T + 24
    TT = T + 32
    for i in range(4):
        a(f"v_cvt_pk_bf16_f32 v{TT+i}, v{SA+2*i}, v{SA+2*i+1}")
    for i in range(4):
        a(f"v_lshlrev_b32 v{Z+2*i}, 16, v{TT+i}")
        a(f"v_and_b32 v{Z+2*i+1}, 0xffff0000, v{TT+i}")
    for i in range(8):
        a(f"v_mul_f32 v{Z+i}, s36, v{Z+i}")
    for i in range(4):
        a(f"v_cvt_pk_bf16_f32 v{TT+i}, v{Z+2*i}, v{Z+2*i+1}")
    for i in range(4):
        a(f"v_lshlrev_b32 v{Z+2*i}, 16, v{TT+i}")
        a(f"v_and_b32 v{Z+2*i+1}, 0xffff0000, v{TT+i}")
    M = T + 36
    Lr = T + 37
    a(f"v_max3_f32 v{M}, v{Z}, v{Z+1}, v{Z+2}")
    a(f"v_max3_f32 v{M}, v{M}, v{Z+3}, v{Z+4}")
    a(f"v_max3_f32 v{M}, v{M}, v{Z+5}, v{Z+6}")
    a(f"v_max_f32 v{M}, v{M}, v{Z+7}")
    a(f"v_mov_b32 v{TT}, v{M}")
    a(f"v_permlane16_swap_b32 v{M}, v{TT}")
    a(f"v_max_f32 v{M}, v{M}, v{TT}")
    a(f"v_mov_b32 v{TT}, v{M}")
    a(f"v_permlane32_swap_b32 v{M}, v{TT}")
    a(f"v_max_f32 v{M}, v{M}, v{TT}")
    a("s_mov_b64 exec, 15")
    a(f"ds_write_b32 v14, v{M} offset:{L_MX}")
    lds_inc(SY_MX)
    MX = T
    lab = a.newlabel("Lspin")
    a.label(lab)
    a(f"ds_read_b32 v{T+4}, v11 offset:{L_SY+SY_MX}")
    a(f"ds_read_b128 v[{MX}:{MX+3}], v12 offset:{L_MX}")
    a("s_waitcnt lgkmcnt(0)")
    a(f"v_readfirstlane_b32 s38, v{T+4}")
    a("s_cmp_lt_u32 s38, 4")
    a(f"s_cbranch_scc1 {lab}")
    a(f"v_max3_f32 v{M}, v{MX}, v{MX+1}, v{MX+2}")
    a(f"v_max_f32 v{M}, v{M}, v{MX+3}")
    for i in range(8):
        a(f"v_sub_f32 v{Z+i}, v{Z+i}, v{M}")
    for i in range(8):
        a(f"v_mul_f32 v{Z+i}, s37, v{Z+i}")
    for i in range(8):
        a(f"v_exp_f32 v{Z+i}, v{Z+i}")
    PH = T
    PL = T + 4
    for i in range(4):
        a(f"v_cvt_pk_bf16_f32 v{PH+i}, v{Z+2*i}, v{Z+2*i+1}")
    sum8(Lr, Z)
    for i in range(4):
        a(f"v_lshlrev_b32 v{TT+1}, 16, v{PH+i}")
        a(f"v_and_b32 v{TT+2}, 0xffff0000, v{PH+i}")
        a(f"v_sub_f32 v{Z+2*i}, v{Z+2*i}, v{TT+1}")
        a(f"v_sub_f32 v{Z+2*i+1}, v{Z+2*i+1}, v{TT+2}")
    for i in range(4):
        a(f"v_cvt_pk_bf16_f32 v{PL+i}, v{Z+2*i}, v{Z+2*i+1}")
    for i in range(4):
        a(f"v_cndmask_b32 v{PH+i}, v{PH+i}, v{PL+i}, s[42:43]")
    a("s_mov_b32 exec_lo, 0x00ff00ff")
    a("s_mov_b32 exec_hi, 0x00ff00ff")
    a(f"ds_write_b128 v13, v[{PH}:{PH+3}] offset:{L_P}")
    a("s_mov_b64 exec, -1")
    a(f"v_mov_b32 v{TT}, v{Lr}")
    a(f"v_permlane16_swap_b32 v{Lr}, v{TT}")
    a(f"v_add_f32 v{Lr}, v{Lr}, v{TT}")
    a(f"v_mov_b32 v{TT}, v{Lr}")
    a(f"v_permlane32_swap_b32 v{Lr}, v{TT}")
    a(f"v_add_f32 v{Lr}, v{Lr}, v{TT}")
    a("s_mov_b64 exec, 15")
    a(f"ds_write_b32 v14, v{Lr} offset:{L_LS}")
    lds_inc(SY_P)
    stamp(6)
    weight_loads()
    a("s_branch L_b3")
    a.label("L_vwave")
    for e in range(VA):
        ldv(e)
    lds_inc(SY_KI)
    common_addrs()
    a("v_mul_u32_u24 v14, 144, v4")
    a("v_mul_u32_u24 v6, 2304, v5")
    a("v_add_u32 v14, v14, v6")
    a("s_mul_i32 s38, s53, 4608")
    a("v_add_u32 v14, s38, v14")
    if VA < 8:
        lds_spin(SY_KI, 5, T)
        for e in range(VA, 8):
            ldv(e)
    a("s_waitcnt vmcnt(0)")
    stamp(4)
    lds_spin(SY_Q, 1, T)
    weight_loads()
    stamp(5)
    PA = T + 32
    V = KV
    OA = T

    def vperm(e):
        u, par = e >> 1, e & 1
        sel = "s40" if par == 0 else "s41"
        f = FR + 4 * (e & 3)
        for i in range(4):
            a(f"v_perm_b32 v{f+i}, v{V+4*(2*i+1)+u}, v{V+4*(2*i)+u}, {sel}")

    def vmfma(e):
        f = FR + 4 * (e & 3)
        a(f"v_mfma_f32_16x16x32_bf16 v[{OA+4*e}:{OA+4*e+3}], v[{PA}:{PA+3}], v[{f}:{f+3}], 0")

    lab = a.newlabel("Lspin")
    a(f"ds_read_b32 v{T+36}, v11 offset:{L_SY+SY_P}")
    a(f"ds_read_b128 v[{PA}:{PA+3}], v13 offset:{L_P}")
    for e in range(4):
        vperm(e)
    a("s_waitcnt lgkmcnt(0)")
    a(f"v_readfirstlane_b32 s38, v{T+36}")
    a("s_cmp_ge_u32 s38, 4")
    a(f"s_cbranch_scc1 {lab}_ok")
    a.label(lab)
    a(f"ds_read_b32 v{T+36}, v11 offset:{L_SY+SY_P}")
    a(f"ds_read_b128 v[{PA}:{PA+3}], v13 offset:{L_P}")
    a("s_waitcnt lgkmcnt(0)")
    a(f"v_readfirstlane_b32 s38, v{T+36}")
    a("s_cmp_lt_u32 s38, 4")
    a(f"s_cbranch_scc1 {lab}")
    a.label(f"{lab}_ok")
    stamp(6)
    for e in range(4):
        vmfma(e)
        vperm(e + 4)
    for e in range(4, 8):
        vmfma(e)
    a("s_mov_b32 exec_hi, 0")
    for e in range(8):
        o = OA + 4 * e
        a(f"ds_write_b128 v14, v[{o}:{o+3}] offset:{L_OL+16*e}")
    a("s_mov_b32 exec_hi, -1")
    a.label("L_b3")
    a("s_waitcnt lgkmcnt(0)")
    a("s_barrier")
    stamp(7)
    OV = T
    assert L_OL % 256 == 0
    for w in range(4):
        o0 = L_OL // 256 + 18 * w
        a(f"ds_read2st64_b32 v[{OV+2*w}:{OV+2*w+1}], v15 offset0:{o0} offset1:{o0+9}")
    OO = T + 8
    a("s_waitcnt lgkmcnt(2)")
    a(f"v_pk_add_f32 v[{OV}:{OV+1}], v[{OV}:{OV+1}], v[{OV+2}:{OV+3}]")
    a("s_waitcnt lgkmcnt(0)")
    a(f"v_pk_add_f32 v[{OV+4}:{OV+5}], v[{OV+4}:{OV+5}], v[{OV+6}:{OV+7}]")
    a(f"v_pk_add_f32 v[{OV}:{OV+1}], v[{OV}:{OV+1}], v[{OV+4}:{OV+5}]")
    a(f"v_add_f32 v{OO}, v{OV}, v{OV+1}")
    a(f"v_min_u32 v{OO}, -2, v{OO}")
    for i in range(1, 4):
        a(f"v_mov_b32_dpp v{OO+i}, v{OO} row_shl:{4*i} {DPPM}")
    a("s_mov_b32 exec_lo, 0x000f000f")
    a("s_mov_b32 exec_hi, 0x000f000f")
    a(f"global_store_dwordx4 v21, v[{OO}:{OO+3}], s[28:29] sc1")
    a("s_mov_b64 exec, -1")
    stamp(8)
    a("s_cmp_eq_u32 s55, 1")
    a("s_cbranch_scc1 L_mlp")
    a("s_cmp_eq_u32 s55, 2")
    a("s_cbranch_scc1 L_data_end")
    a("v_and_b32 v3, 3, v1")
    a("s_lshl_b32 s44, s30, 1")
    a("s_add_u32 s44, s44, s50")
    a("s_lshl_b32 s45, s44, 3")
    a("s_add_u32 s45, s45, s51")
    a("s_lshl_b32 s45, s45, 12")
    a(f"s_add_u32 s45, s45, {OBUF}")
    a("v_lshlrev_b32 v17, 10, v3")
    a("v_lshrrev_b32 v18, 2, v1")
    a("v_lshl_add_u32 v17, v18, 4, v17")
    a("v_add_u32 v17, s45, v17")
    a("v_lshlrev_b32 v22, 4, v18")
    a("s_lshl_b32 s45, s50, 3")
    a("v_add_u32 v23, s45, v22")
    a("s_lshl_b32 s44, s44, 11")
    a(f"s_add_u32 s44, s44, {MLBUF}")
    a("v_lshlrev_b32 v18, 3, v5")
    a("v_lshl_add_u32 v18, v3, 9, v18")
    a("v_add_u32 v18, s44, v18")
    a("s_lshl_b32 s44, s52, 3")
    a("s_add_u32 s44, s44, s3")
    a("s_lshl_b32 s44, s44, 13")
    a("s_lshl_b32 s45, s30, 3")
    a("s_add_u32 s45, s45, s51")
    a("s_lshl_b32 s45, s45, 7")
    a("s_add_u32 s44, s44, s45")
    a(f"s_add_u32 s44, s44, {PBUF}")
    a("v_lshlrev_b32 v19, 5, v3")
    a("v_and_b32 v3, 1, v5")
    a("v_lshl_add_u32 v19, v3, 4, v19")
    a("v_lshrrev_b32 v3, 5, v1")
    a("v_lshl_add_u32 v19, v3, 17, v19")
    a("v_add_u32 v19, s44, v19")
    a("s_waitcnt vmcnt(1)")
    stamp(11)
    WP = FR
    for pr in range(2):
        for u in range(4):
            for par in range(2):
                sel = "s40" if par == 0 else "s41"
                a(f"v_perm_b32 v{WP+pr*8+2*u+par}, v{WO+(2*pr+1)*4+u}, v{WO+(2*pr)*4+u}, {sel}")
    PO = T
    PM = T + 16
    CK = T + 24
    OP = T + 16
    a("s_cmp_lg_u32 s53, 0")
    a("s_cbranch_scc1 L_opspin")
    masked_poll("L_poll_h2",
                [(f"global_load_dwordx4 v[{PO+4*i}:{PO+4*i+3}], v17, s[28:29] offset:{256*i} sc1", PO + 4 * i, 4) for i in range(4)] +
                [(f"global_load_dwordx2 v[{PM+2*i}:{PM+2*i+1}], v18, s[28:29] offset:{128*i} sc1", PM + 2 * i, 2) for i in range(4)], CK)
    stamp(12)
    X = T + 24
    a(f"v_max3_f32 v{X}, v{PM}, v{PM+2}, v{PM+4}")
    a(f"v_max_f32 v{X}, v{X}, v{PM+6}")
    a(f"v_max_f32_dpp v{X}, v{X}, v{X} quad_perm:[1,0,3,2] {DPPM}")
    a(f"v_max_f32_dpp v{X}, v{X}, v{X} quad_perm:[2,3,0,1] {DPPM}")
    for i in range(4):
        a(f"v_sub_f32 v{PM+2*i}, v{PM+2*i}, v{X}")
    for i in range(4):
        a(f"v_mul_f32 v{PM+2*i}, s37, v{PM+2*i}")
    for i in range(4):
        a(f"v_exp_f32 v{PM+2*i}, v{PM+2*i}")
    LL = T + 25
    OS = T + 26
    a(f"v_mul_f32 v{LL}, v{PM}, v{PM+1}")
    for e in range(4):
        a(f"v_mul_f32 v{OS+e}, v{PM}, v{PO+e}")
    for i in range(1, 4):
        a(f"v_fmac_f32 v{LL}, v{PM+2*i}, v{PM+2*i+1}")
        for e in range(4):
            a(f"v_fmac_f32 v{OS+e}, v{PM+2*i}, v{PO+4*i+e}")
    for qp in ("[1,0,3,2]", "[2,3,0,1]"):
        for r in (LL, OS, OS + 1, OS + 2, OS + 3):
            a(f"v_add_f32_dpp v{r}, v{r}, v{r} quad_perm:{qp} {DPPM}")
    a(f"v_rcp_f32 v{X}, v{LL}")
    for e in range(4):
        a(f"v_mul_f32 v{PO+e}, v{OS+e}, v{X}")
    for e in range(4):
        a(f"v_fma_f32 v{OS+e}, -v{PO+e}, v{LL}, v{OS+e}")
    for e in range(4):
        a(f"v_fmac_f32 v{PO+e}, v{OS+e}, v{X}")
    a(f"v_cvt_pk_bf16_f32 v{OP}, v{PO}, v{PO+1}")
    a(f"v_cvt_pk_bf16_f32 v{OP+1}, v{PO+2}, v{PO+3}")
    a(f"ds_write_b64 v23, v[{OP}:{OP+1}] offset:{L_P1}")
    lds_inc(SY_O)
    a.label("L_opspin")
    a(f"ds_read_b32 v{T}, v11 offset:{L_SY+SY_O}")
    a(f"ds_read_b128 v[{OP}:{OP+3}], v22 offset:{L_P1}")
    a("s_waitcnt lgkmcnt(0)")
    a(f"v_readfirstlane_b32 s38, v{T}")
    a("s_cmp_lt_u32 s38, 3")
    a("s_cbranch_scc1 L_opspin")
    stamp(9)
    AC = T
    for b in range(2):
        for c in range(8):
            a(f"v_dot2_f32_bf16 v{AC+b*8+c}, v{WP+c}, v{OP+2*b}, 0")
    for b in range(2):
        for c in range(8):
            a(f"v_dot2_f32_bf16 v{AC+b*8+c}, v{WP+8+c}, v{OP+2*b+1}, v{AC+b*8+c}")

    def red16(rors):
        for e in range(8):
            a(f"v_permlane32_swap_b32 v{AC+e}, v{AC+8+e}")
        for e in range(4):
            a(f"v_pk_add_f32 v[{AC+2*e}:{AC+2*e+1}], v[{AC+2*e}:{AC+2*e+1}], v[{AC+8+2*e}:{AC+8+2*e+1}]")
        for e in range(4):
            a(f"v_permlane16_swap_b32 v{AC+e}, v{AC+4+e}")
        for e in range(2):
            a(f"v_pk_add_f32 v[{AC+2*e}:{AC+2*e+1}], v[{AC+2*e}:{AC+2*e+1}], v[{AC+4+2*e}:{AC+4+2*e+1}]")
        for n in rors:
            for e in range(4):
                a(f"v_add_f32_dpp v{AC+e}, v{AC+e}, v{AC+e} row_ror:{n} {DPPM}")
        for e in range(4):
            a(f"v_min_u32 v{AC+e}, -2, v{AC+e}")

    red16((4, 8))
    a("s_mov_b32 exec_lo, 0x000f000f")
    a("s_mov_b32 exec_hi, 0x000f000f")
    a(f"global_store_dwordx4 v19, v[{AC}:{AC+3}], s[28:29] sc1")
    a("s_mov_b64 exec, -1")
    stamp(10)
    a("s_branch L_data_end")
    a.label("L_mlp")
    mlp_loads()
    a("v_lshrrev_b32 v14, 3, v1")
    a("v_bfe_u32 v3, v1, 1, 1")
    a("v_lshl_add_u32 v14, v14, 1, v3")
    a("v_lshlrev_b32 v14, 2, v14")
    a("v_bfe_u32 v3, v1, 2, 1")
    a("v_lshl_add_u32 v14, v3, 6, v14")
    a("v_and_b32 v3, 1, v1")
    a("v_lshl_add_u32 v14, v3, 10, v14")
    a(f"v_add_u32 v14, {L_HL}, v14")
    a("v_and_b32 v12, 1, v1")
    a("v_lshlrev_b32 v12, 10, v12")
    a("v_lshl_add_u32 v12, v5, 4, v12")
    a("v_bfe_u32 v3, v1, 1, 1")
    a("v_lshl_add_u32 v12, v3, 6, v12")
    a("s_lshl_b32 s36, s3, 7")
    a("v_add_u32 v12, s36, v12")
    a("v_and_b32 v13, 7, v4")
    a("v_lshlrev_b32 v13, 3, v13")
    a("v_lshrrev_b32 v3, 3, v4")
    a("v_lshl_add_u32 v13, v3, 7, v13")
    a("s_lshl_b32 s36, s3, 8")
    a(f"s_add_u32 s36, s36, {L_HL}")
    a("v_add_u32 v13, s36, v13")
    a("v_cmp_ne_u32 s[42:43], 0, v3")
    a("v_bfe_u32 v15, v1, 2, 1")
    a("v_lshrrev_b32 v3, 5, v1")
    a("v_lshl_add_u32 v15, v3, 4, v15")
    a("s_lshl_b32 s36, s3, 1")
    a("v_add_lshl_u32 v15, v15, s36, 14")
    a("v_and_b32 v3, 3, v1")
    a("v_lshl_add_u32 v15, v3, 5, v15")
    a("v_and_b32 v3, 1, v5")
    a("v_lshl_add_u32 v15, v3, 4, v15")
    a("s_lshl_b32 s36, s35, 7")
    a(f"s_add_u32 s36, s36, {YBUF}")
    a("v_add_u32 v15, s36, v15")
    a("s_mov_b32 s36, 0x3d372713")
    a("s_waitcnt vmcnt(0)")
    B1F = KV
    for par in range(2):
        sel = "s40" if par == 0 else "s41"
        for i in range(4):
            a(f"v_perm_b32 v{B1F+par*4+i}, v{W1+2*i+1}, v{W1+2*i}, {sel}")
    W2P = FR
    for u in range(4):
        for par in range(2):
            sel = "s40" if par == 0 else "s41"
            a(f"v_perm_b32 v{W2P+2*u+par}, v{W2+4+u}, v{W2+u}, {sel}")
    a(f"v_lshlrev_b32 v{B1}, 16, v{B1}")
    stamp(11)
    a("s_barrier")
    stamp(12)
    HF = T
    a(f"ds_read_b128 v[{HF}:{HF+3}], v12 offset:{L_HN}")
    HA = T + 8
    a("s_waitcnt lgkmcnt(0)")
    for par in range(2):
        a(f"v_mfma_f32_16x16x32_bf16 v[{HA+4*par}:{HA+4*par+3}], v[{HF}:{HF+3}], v[{B1F+par*4}:{B1F+par*4+3}], 0")
    for par in range(2):
        for b in range(2):
            a(f"v_cndmask_b32 v{HA+4*par+b}, v{HA+4*par+b}, v{HA+4*par+2+b}, s[42:43]")
    a("s_mov_b64 exec, 0xffff")
    a(f"ds_write2_b32 v13, v{HA}, v{HA+4} offset0:0 offset1:1")
    a(f"ds_write2_b32 v13, v{HA+1}, v{HA+5} offset0:16 offset1:17")
    a("s_mov_b64 exec, -1")
    a("s_waitcnt lgkmcnt(0)")
    a("s_barrier")
    for i in range(4):
        a(f"ds_read2_b32 v[{T+2*i}:{T+2*i+1}], v14 offset0:{64*i} offset1:{64*i+32}")
    a("s_waitcnt lgkmcnt(2)")
    a(f"v_pk_add_f32 v[{T}:{T+1}], v[{T}:{T+1}], v[{T+2}:{T+3}]")
    a("s_waitcnt lgkmcnt(0)")
    a(f"v_pk_add_f32 v[{T+4}:{T+5}], v[{T+4}:{T+5}], v[{T+6}:{T+7}]")
    a(f"v_pk_add_f32 v[{T}:{T+1}], v[{T}:{T+1}], v[{T+4}:{T+5}]")
    H = T + 16
    a(f"v_add_f32 v{H}, v{T}, v{T+1}")
    a(f"v_add_f32_dpp v{H}, v{H}, v{H} quad_perm:[1,0,3,2] {DPPM}")
    a(f"v_cvt_pk_bf16_f32 v{H}, v{H}, v{H}")
    a(f"v_lshlrev_b32 v{H}, 16, v{H}")
    a(f"v_add_f32 v{H}, v{H}, v{B1}")
    a(f"v_cvt_pk_bf16_f32 v{H}, v{H}, v{H}")
    a(f"v_lshlrev_b32 v{H}, 16, v{H}")
    t1, t2 = T + 17, T + 18
    a(f"v_mul_f32 v{t1}, v{H}, v{H}")
    a(f"v_fma_f32 v{t1}, v{t1}, s36, 1.0")
    a(f"v_mul_f32 v{t1}, v{t1}, v{H}")
    a(f"v_mul_f32 v{t1}, 0xc0135761, v{t1}")
    a(f"v_exp_f32 v{t1}, v{t1}")
    a(f"v_add_f32 v{t1}, 1.0, v{t1}")
    a(f"v_rcp_f32 v{t2}, v{t1}")
    a(f"v_mul_f32 v{H}, v{H}, v{t2}")
    a(f"v_mov_b32_dpp v{t1}, v{H} quad_perm:[2,3,0,1] {DPPM}")
    a(f"v_cvt_pk_bf16_f32 v{t2}, v{H}, v{t1}")
    GP = T + 20
    a(f"v_mov_b32_dpp v{t1}, v{t2} quad_perm:[0,0,0,0] {DPPM}")
    a(f"v_mov_b32 v{GP}, v{t1}")
    a(f"v_mov_b32 v{GP+1}, v{t1}")
    a(f"v_mov_b32_dpp v{GP}, v{t1} row_shr:4 row_mask:0xf bank_mask:0xa")
    a(f"v_mov_b32_dpp v{GP+1}, v{t1} row_shl:4 row_mask:0xf bank_mask:0x5")
    for b in range(2):
        for c in range(8):
            a(f"v_dot2_f32_bf16 v{AC+b*8+c}, v{W2P+c}, v{GP+b}, 0")
    red16((8,))
    a("s_mov_b32 exec_lo, 0x00ff00ff")
    a("s_mov_b32 exec_hi, 0x00ff00ff")
    a(f"global_store_dwordx4 v15, v[{AC}:{AC+3}], s[28:29] sc1")
    a("s_mov_b64 exec, -1")
    stamp(13)
    a.label("L_data_end")
    stamp_dump(14)
    a("s_endpgm")

    a.label("L_comm")
    a("s_setprio 3")
    a("s_mov_b32 s3, 8")
    for i in range(4):
        a(f"v_mov_b32 v{28+i}, 0")
    a(f"ds_write_b128 v28, v[28:31] offset:{L_SY}")
    a(f"ds_write_b128 v28, v[28:31] offset:{L_SY+16}")
    a("v_lshlrev_b32 v9, 5, v1")
    a("v_and_b32 v3, 3, v1")
    a("v_and_b32 v7, 7, v1")
    a("s_waitcnt lgkmcnt(0)")
    H0 = 24
    a(f"global_load_dwordx4 v[{H0}:{H0+3}], v9, s[4:5]")
    a(f"global_load_dwordx4 v[{H0+4}:{H0+7}], v9, s[4:5] offset:16")
    a("s_load_dwordx2 s[60:61], s[28:29], 0")
    a("s_lshl_b32 s36, s30, 1")
    a("s_add_u32 s36, s36, s32")
    a("s_lshl_b32 s36, s36, 4")
    a("s_add_u32 s36, s36, s33")
    a("s_lshl_b32 s36, s36, 7")
    a(f"s_add_u32 s36, s36, {MLBUF}")
    a("v_add_u32 v6, s36, v2")
    a("v_lshlrev_b32 v17, 3, v1")
    a("v_add_u32 v17, s36, v17")
    a("s_mov_b64 exec, 3")
    a("global_store_dwordx4 v6, v[12:15], s[28:29] sc1")
    a("s_mov_b64 exec, -1")
    a("s_mov_b32 s39, s57")
    a("v_lshrrev_b32 v18, 3, v1")
    a("v_lshlrev_b32 v18, 12, v18")
    a("v_lshl_add_u32 v18, v7, 3, v18")
    a("s_lshl_b32 s36, s39, 7")
    a("v_add_u32 v19, s36, v18")
    a(f"v_add_u32 v18, {HBUF}, v19")
    a(f"v_add_u32 v19, {FLAGS}, v19")
    a("s_cmp_eq_u32 s56, 0")
    a("s_cbranch_scc1 L_nohclr")
    a("s_mov_b32 exec_lo, 0x55555555")
    a("s_mov_b32 exec_hi, 0x55555555")
    a("global_store_dwordx4 v18, v[12:15], s[28:29] sc1")
    a("s_mov_b64 exec, -1")
    a("s_lshl_b32 s36, s39, 5")
    a("v_lshl_add_u32 v6, v7, 2, v5")
    a("v_add_lshl_u32 v8, v6, s36, 1")
    a("global_load_ushort v20, v8, s[4:5]")
    a("s_and_b32 s36, s36, 511")
    a("v_add_lshl_u32 v8, v6, s36, 1")
    a("global_load_ushort v21, v8, s[22:23]")
    a.label("L_nohclr")
    a("s_barrier")
    a("s_mov_b32 s36, 0x3f803f80")
    a("s_waitcnt vmcnt(0) lgkmcnt(0)")
    layernorm(H0, True)
    a(f"ds_write_b128 v9, v[{H0}:{H0+3}] offset:{L_HN}")
    a(f"ds_write_b128 v9, v[{H0+4}:{H0+7}] offset:{L_HN+16}")
    lds_inc(SY_XN)
    stamp(1)
    a("s_add_u32 s60, s60, 1")
    a("s_addc_u32 s61, s61, 0")
    a("v_mov_b32 v26, s60")
    a("v_mov_b32 v27, s61")
    a("v_lshlrev_b32 v20, 16, v20")
    a("v_lshlrev_b32 v21, 16, v21")
    a("s_lshl_b32 s36, s30, 15")
    a("s_lshl_b32 s37, s31, 9")
    a("s_add_u32 s36, s36, s37")
    a(f"s_add_u32 s36, s36, {QBUF}")
    a("v_lshrrev_b32 v12, 5, v1")
    a("v_lshlrev_b32 v12, 14, v12")
    a("v_and_b32 v6, 31, v1")
    a("v_lshl_add_u32 v12, v6, 4, v12")
    a("v_add_u32 v12, s36, v12")
    a("v_lshlrev_b32 v15, 7, v6")
    a("s_lshl_b32 s38, s30, 12")
    a(f"s_add_u32 s38, s38, {FLAGS}")
    a("v_add_u32 v15, s38, v15")
    a("v_lshlrev_b32 v6, 3, v1")
    a("s_lshl_b32 s38, s30, 15")
    a("s_lshl_b32 s37, s32, 14")
    a("s_add_u32 s38, s38, s37")
    a(f"s_add_u32 s38, s38, {QBUF}")
    a("v_add_u32 v28, s38, v2")
    a("v_add_u32 v29, 4096, v28")
    a("v_add_u32 v30, 8192, v28")
    a("v_add_u32 v31, 12288, v28")
    a("v_lshlrev_b32 v16, 2, v1")
    a("s_barrier")
    stamp(2)
    for w in range(8):
        a(f"ds_read_b64 v[{32+2*w}:{33+2*w}], v6 offset:{L_OL+512*w}")
    a("s_cmp_eq_u32 s56, 0")
    a("s_cbranch_scc1 L_noflag")
    a("s_mov_b32 exec_lo, 0x01010101")
    a("s_mov_b32 exec_hi, 0x01010101")
    a("global_store_dwordx2 v19, v[26:27], s[28:29] sc1")
    a("s_mov_b64 exec, -1")
    a.label("L_noflag")
    a("s_waitcnt lgkmcnt(0)")
    for w in range(4):
        a(f"v_pk_add_f32 v[{32+4*w}:{33+4*w}], v[{32+4*w}:{33+4*w}], v[{34+4*w}:{35+4*w}]")
    a("v_pk_add_f32 v[32:33], v[32:33], v[36:37]")
    a("v_pk_add_f32 v[40:41], v[40:41], v[44:45]")
    a("v_pk_add_f32 v[24:25], v[32:33], v[40:41]")
    a("global_store_dwordx4 v12, v[24:27], s[28:29] sc1")
    lds_inc(SY_QP)
    stamp(3)

    def pipelined_poll(name, nset, nload, issue, check, done, sl):
        for k in range(nset - 1):
            issue(k)
            if sl:
                a(f"s_sleep {sl}")
        a.label(name)
        for k in range(nset):
            issue((k + nset - 1) % nset)
            a(f"s_waitcnt vmcnt({nload*(nset-1)})")
            check(k)
            a(f"s_cbranch_vccz {name}_ok{k}")
            if sl:
                a(f"s_sleep {sl}")
        a("s_sub_u32 s62, s62, 1")
        a("s_cmp_gt_i32 s62, 0")
        a(f"s_cbranch_scc1 {name}")
        for k in range(nset):
            a.label(f"{name}_ok{k}")
            done(k)
            if k < nset - 1:
                a(f"s_branch {name}_done")
        a.label(f"{name}_done")

    def qissue(k):
        b = 32 + 64 * k
        for ks in range(4):
            for i in range(4):
                r = b + 16 * ks + 4 * i
                a(f"global_load_dwordx4 v[{r}:{r+3}], v{28+ks}, s[28:29] offset:{1024*i} sc1")

    def qcheck(k):
        b = 32 + 64 * k
        a(f"v_cmp_ne_u64 vcc, s[60:61], v[{b+2}:{b+3}]")
        for n in range(1, 16):
            a(f"v_cmp_ne_u64 s[{44+2*(n&3)}:{45+2*(n&3)}], s[60:61], v[{b+4*n+2}:{b+4*n+3}]")
            a(f"s_or_b64 vcc, vcc, s[{44+2*(n&3)}:{45+2*(n&3)}]")

    def qdone(k):
        b = 32 + 64 * k
        for i in range(4):
            r = b + 4 * i
            a(f"v_pk_add_f32 v[{r}:{r+1}], v[{r}:{r+1}], v[{r+16}:{r+17}]")
            a(f"v_pk_add_f32 v[{r+32}:{r+33}], v[{r+32}:{r+33}], v[{r+48}:{r+49}]")
        for i in range(4):
            r = b + 4 * i
            a(f"v_pk_add_f32 v[{r}:{r+1}], v[{r}:{r+1}], v[{r+32}:{r+33}]")
        for i in range(4):
            r = b + 4 * i
            a(f"v_cvt_pk_bf16_f32 v{r}, v{r}, v{r+1}")
        for i in range(4):
            r = b + 4 * i
            a(f"ds_write_b32 v16, v{r} offset:{L_Q+256*i}")

    lds_spin(SY_KI, 4, 24)
    if pdelay > 1:
        a(f"s_sleep {pdelay}")
    if VA < 8:
        qissue(0)
        lds_inc(SY_KI)
        a("s_waitcnt vmcnt(0)")
        qcheck(0)
        a("s_cbranch_vccz L_poll_q_ok0")
    pipelined_poll("L_poll_q", NSET, 16, qissue, qcheck, qdone, psl)
    lds_inc(SY_Q)
    stamp(4)
    a("v_lshlrev_b32 v13, 4, v3")
    lds_spin(SY_P, 4, 32)
    a(f"ds_read_b128 v[32:35], v13 offset:{L_MX}")
    a(f"ds_read_b128 v[36:39], v13 offset:{L_LS}")
    a("s_waitcnt lgkmcnt(0)")
    a("v_max3_f32 v24, v32, v33, v34")
    a("v_max_f32 v24, v24, v35")
    a("v_min_u32 v24, -2, v24")
    a("v_pk_add_f32 v[36:37], v[36:37], v[38:39]")
    a("v_add_f32 v25, v36, v37")
    a("v_min_u32 v25, -2, v25")
    a("s_mov_b64 exec, 15")
    a("global_store_dwordx2 v17, v[24:25], s[28:29] sc1")
    a("s_mov_b64 exec, -1")
    stamp(6)
    a("s_barrier")
    a("s_cmp_eq_u32 s55, 2")
    a("s_cbranch_scc1 L_comm_end")
    a.label("L_poll_f")
    a("global_load_dwordx2 v[24:25], v15, s[28:29] sc1")
    a("s_waitcnt vmcnt(0)")
    a("v_cmp_ne_u64 vcc, s[60:61], v[24:25]")
    poll_end("L_poll_f")
    lds_inc(SY_O)
    stamp(5)
    a("s_cmp_eq_u32 s55, 1")
    a("s_cbranch_scc1 L_comm_mlp")
    a("s_cmp_eq_u32 s56, 0")
    a("s_cbranch_scc1 L_comm_end")
    a("s_mov_b32 s36, s57")
    a("s_lshl_b32 s37, s36, 13")
    a(f"s_add_u32 s38, s37, {PBUF}")
    a("v_add_u32 v12, s38, v2")
    a("v_add_u32 v13, 4096, v12")
    a("s_lshl_b32 s37, s36, 14")
    a(f"s_add_u32 s38, s37, {YBUF}")
    a("v_add_u32 v14, s38, v2")
    a("v_add_u32 v15, 4096, v14")
    a("v_add_u32 v16, 8192, v14")
    a("v_add_u32 v17, 12288, v14")
    a("s_lshl_b32 s37, s36, 6")
    a("v_lshlrev_b32 v19, 3, v7")
    a("v_add_u32 v19, s37, v19")
    a("s_waitcnt vmcnt(0)")

    def pk(d, s):
        a(f"v_pk_add_f32 v[{d}:{d+1}], v[{d}:{d+1}], v[{s}:{s+1}]")
        a(f"v_pk_add_f32 v[{d+2}:{d+3}], v[{d+2}:{d+3}], v[{s+2}:{s+3}]")

    def tree(base, n):
        idx = [base + 4 * i for i in range(n)]
        while len(idx) > 2:
            nxt = []
            for i in range(0, len(idx) - 1, 2):
                pk(idx[i], idx[i + 1])
                nxt.append(idx[i])
            if len(idx) % 2:
                nxt.append(idx[-1])
            idx = nxt
        a(f"v_pk_add_f32 v[24:25], v[{idx[0]}:{idx[0]+1}], v[{idx[1]}:{idx[1]+1}]")
        a(f"v_pk_add_f32 v[26:27], v[{idx[0]+2}:{idx[0]+3}], v[{idx[1]+2}:{idx[1]+3}]")

    def red_tail():
        a("v_permlane32_swap_b32 v24, v26")
        a("v_permlane32_swap_b32 v25, v27")
        a("v_pk_add_f32 v[24:25], v[24:25], v[26:27]")
        a("v_permlane16_swap_b32 v24, v25")
        a("v_add_f32 v24, v24, v25")
        a(f"v_add_f32_dpp v24, v24, v24 row_ror:8 {DPPM}")

    def pack_rows(src):
        a(f"v_mov_b32 v24, v{src}")
        a(f"v_mov_b32 v25, v{src}")
        a("v_permlane16_swap_b32 v24, v25")
        a("v_perm_b32 v24, v25, v24, s41")
        a("v_mov_b32 v25, v24")
        a("v_permlane32_swap_b32 v24, v25")

    def widen_pack():
        a(f"v_mov_b32_dpp v26, v24 quad_perm:[1,0,3,2] {DPPM}")
        a(f"v_mov_b32_dpp v27, v25 quad_perm:[1,0,3,2] {DPPM}")

    def mk(n, areg):
        def issue(k):
            b = 32 + 4 * n * k
            for i in range(n):
                a(f"global_load_dwordx4 v[{b+4*i}:{b+4*i+3}], v{areg+(i>>2)}, s[28:29] offset:{1024*(i&3)} sc1")

        def check(k):
            check_sentinel(32 + 4 * n * k, 4 * n, 28)

        def done(k):
            tree(32 + 4 * n * k, n)
        return issue, check, done

    masked_poll("L_poll_p", [(f"global_load_dwordx4 v[{32+4*i}:{35+4*i}], v{12+(i>>2)}, s[28:29] offset:{1024*(i&3)} sc1", 32 + 4 * i, 4) for i in range(8)], 28)
    tree(32, 8)
    stamp(7)
    red_tail()
    a("v_cvt_pk_bf16_f32 v24, v24, v24")
    a("v_lshlrev_b32 v24, 16, v24")
    a("v_add_f32 v24, v24, v20")
    a("v_cvt_pk_bf16_f32 v24, v24, v24")
    a("v_lshlrev_b32 v22, 16, v24")
    pack_rows(22)
    a("v_min_u32 v24, -2, v24")
    a("v_min_u32 v25, -2, v25")
    widen_pack()
    a("s_mov_b32 exec_lo, 0x55555555")
    a("s_mov_b32 exec_hi, 0x55555555")
    a("global_store_dwordx4 v18, v[24:27], s[28:29] sc1")
    a("s_mov_b64 exec, -1")
    stamp(8)
    a("s_cmp_lg_u32 s57, 0")
    a("s_cbranch_scc1 L_noepoch")
    a("v_mov_b32 v28, s60")
    a("v_mov_b32 v29, s61")
    a("s_mov_b64 exec, 1")
    a("global_store_dwordx2 v11, v[28:29], s[28:29] sc1")
    a("s_mov_b64 exec, -1")
    a.label("L_noepoch")
    a("s_waitcnt vmcnt(0)")
    masked_poll("L_poll_y", [(f"global_load_dwordx4 v[{32+4*i}:{35+4*i}], v{14+(i>>2)}, s[28:29] offset:{1024*(i&3)} sc1", 32 + 4 * i, 4) for i in range(14)], 28)
    tree(32, 14)
    stamp(9)
    red_tail()
    a("v_cvt_pk_bf16_f32 v24, v24, v24")
    a("v_lshlrev_b32 v24, 16, v24")
    a("v_add_f32 v24, v24, v21")
    a("v_cvt_pk_bf16_f32 v24, v24, v24")
    a("v_lshlrev_b32 v24, 16, v24")
    a("v_add_f32 v24, v24, v22")
    a("v_cvt_pk_bf16_f32 v24, v24, v24")
    a("v_lshlrev_b32 v23, 16, v24")
    pack_rows(23)
    widen_pack()
    a("s_mov_b64 exec, 0x55")
    a("global_store_dwordx4 v19, v[24:27], s[24:25]")
    a("s_mov_b64 exec, -1")
    stamp(10)
    a("s_branch L_comm_end")
    a.label("L_comm_mlp")
    a("v_lshrrev_b32 v12, 1, v1")
    a("v_lshlrev_b32 v12, 7, v12")
    a("v_and_b32 v14, 1, v1")
    a("v_lshl_add_u32 v12, v14, 5, v12")
    a("s_lshl_b32 s36, s30, 12")
    a(f"s_add_u32 s36, s36, {HBUF}")
    a("v_add_u32 v12, s36, v12")
    a("s_mov_b32 s36, 0x3f803f80")
    a.label("L_poll_h")
    a(f"global_load_dwordx4 v[{H0}:{H0+3}], v12, s[28:29] sc1")
    a(f"global_load_dwordx4 v[{H0+4}:{H0+7}], v12, s[28:29] offset:16 sc1")
    a("s_waitcnt vmcnt(0)")
    check_sentinel(H0, 8, 40)
    poll_end("L_poll_h")
    stamp(7)
    layernorm(H0, False)
    a(f"ds_write_b128 v9, v[{H0}:{H0+3}] offset:{L_HN}")
    a(f"ds_write_b128 v9, v[{H0+4}:{H0+7}] offset:{L_HN+16}")
    a("s_waitcnt lgkmcnt(0)")
    a("s_barrier")
    stamp(8)
    a.label("L_comm_end")
    stamp_dump(14)
    a.label("L_end")
    a("s_endpgm")

    R('.section .rodata,"a"')
    R(".p2align 6")
    R(f".amdhsa_kernel {NAME}_kernel")
    R("  .amdhsa_next_free_vgpr 160")
    R("  .amdhsa_next_free_sgpr 102")
    R("  .amdhsa_accum_offset 160")
    R("  .amdhsa_group_segment_fixed_size 0")
    R("  .amdhsa_kernarg_size 104")
    R("  .amdhsa_user_sgpr_count 2")
    R("  .amdhsa_user_sgpr_kernarg_segment_ptr 1")
    R("  .amdhsa_system_sgpr_workgroup_id_x 1")
    R("  .amdhsa_float_denorm_mode_32 3")
    R(".end_amdhsa_kernel")
    return a.text()


if __name__ == "__main__":
    out = sys.argv[1] if len(sys.argv) > 1 else "k.s"
    kw = {}
    for arg in sys.argv[2:]:
        if arg == "stamps":
            kw["stamps"] = True
        else:
            k, v = arg.split("=")
            kw[k] = int(v)
    open(out, "w").write(gen(**kw))
```

```python
import sys
from asmlib import Asm

NAME = "sequential_preLN__sliding_block_cached__dense_activation_gelu__decode"

EPOCH = 0
FLAGS = 32768
QBUF = 262144
MLBUF = 131072
HBUF = 196608
OBUF = 1 << 20
PBUF = OBUF + (512 << 10)
YBUF = OBUF + (768 << 10)
STAMP = 8 << 20

L_P1 = 0
L_Q = 1024
L_MX = 2048
L_LS = 2112
L_SY = 2176
SY_Q, SY_MX, SY_P, SY_O, SY_KI, SY_XN, SY_QP = 0, 4, 8, 12, 20, 24, 28
L_HL = 2304
L_HN = 4352
L_OL = 6400
L_P = L_OL + 8 * 2304
L_TOTAL = L_P + 2048

NMLP = 112
RED0 = 224
LOG2E = 0x3FB8AA3B
SCALE = 0x3DB504F3
DPPM = "row_mask:0xf bank_mask:0xf"


def gen(stamps=False, K0=8, VA=8, NSET=1, psl=0, RS=2, rsl=1, pdelay=1, dbg=0):
    nt = " nt"
    dbgset = (0, 2, 4, 6, 7, 8, 9, 10)
    a = Asm()
    R = a.raw
    R(f"; @launch grid=(256,1,1) block=(576,1,1) lds={L_TOTAL}")
    R('.amdgcn_target "amdgcn-amd-amdhsa--gfx950"')
    R(".text")
    R(f".globl {NAME}_kernel")
    R(".p2align 8")
    R(f".type {NAME}_kernel,@function")
    R(f"{NAME}_kernel:")

    def stamp(i):
        if stamps or (dbg and i in dbgset):
            a(f"s_memrealtime s[{70+2*i}:{71+2*i}]")

    def stamp_dump(n):
        if not stamps:
            return
        a("s_waitcnt lgkmcnt(0)")
        a("s_lshl_b32 s36, s2, 4")
        a("s_add_u32 s36, s36, s3")
        a("s_lshl_b32 s36, s36, 6")
        a(f"s_add_u32 s36, s36, {STAMP}")
        a("v_mov_b32 v2, s36")
        a("s_mov_b64 exec, 1")
        for i in range(n):
            a(f"v_mov_b32 v3, s{70+2*i}")
            a(f"global_store_dword v2, v3, s[28:29] offset:{4*i}")
        a("s_mov_b64 exec, -1")

    def poll_end(lab):
        a(f"s_cbranch_vccz {lab}_ok")
        a("s_sub_u32 s62, s62, 1")
        a("s_cmp_gt_i32 s62, 0")
        a(f"s_cbranch_scc1 {lab}")
        a.label(f"{lab}_ok")

    def check_sentinel(base, n, ck):
        a(f"v_max3_u32 v{ck}, v{base}, v{base+1}, v{base+2}")
        i = 3
        while i < n:
            if i + 1 < n:
                a(f"v_max3_u32 v{ck}, v{ck}, v{base+i}, v{base+i+1}")
            else:
                a(f"v_max_u32 v{ck}, v{ck}, v{base+i}")
            i += 2
        a(f"v_cmp_eq_u32 vcc, -1, v{ck}")

    def masked_poll(name, loads, ck):
        n = len(loads)
        a(f"s_mov_b32 s58, {(1 << n) - 1}")
        a.label(name)
        for i, (txt, base, nr) in enumerate(loads):
            a(f"s_bitcmp0_b32 s58, {i}")
            a(f"s_cbranch_scc1 {name}_s{i}")
            a(txt)
            a.label(f"{name}_s{i}", flush=False)
        a("s_waitcnt vmcnt(0)")
        for i, (txt, base, nr) in enumerate(loads):
            a(f"s_bitcmp0_b32 s58, {i}")
            a(f"s_cbranch_scc1 {name}_c{i}")
            if nr == 4:
                a(f"v_max3_u32 v{ck}, v{base}, v{base+1}, v{base+2}")
                a(f"v_max_u32 v{ck}, v{ck}, v{base+3}")
            else:
                a(f"v_max_u32 v{ck}, v{base}, v{base+1}")
            a(f"v_cmp_eq_u32 vcc, -1, v{ck}")
            a.raw(f"    s_cbranch_vccnz {name}_c{i}")
            a(f"s_bitset0_b32 s58, {i}")
            a.label(f"{name}_c{i}", flush=False)
        a("s_cmp_eq_u32 s58, 0")
        a(f"s_cbranch_scc1 {name}_ok")
        a("s_sub_u32 s62, s62, 1")
        a("s_cmp_gt_i32 s62, 0")
        a(f"s_cbranch_scc1 {name}")
        a.label(f"{name}_ok")

    def lds_spin(off, n, vt):
        lab = a.newlabel("Lspin")
        a.label(lab)
        a(f"ds_read_b32 v{vt}, v11 offset:{L_SY+off}")
        a("s_waitcnt lgkmcnt(0)")
        a(f"v_readfirstlane_b32 s38, v{vt}")
        a(f"s_cmp_lt_u32 s38, {n}")
        a(f"s_cbranch_scc1 {lab}")

    def lds_inc(off):
        a("s_mov_b64 exec, 1")
        a(f"ds_add_u32 v11, v10 offset:{L_SY+off}")
        a("s_mov_b64 exec, -1")

    def ln_scalars(var, mean, t0, t1, t2):
        a(f"v_cvt_pk_bf16_f32 v{t0}, v{var}, v{mean}")
        a(f"v_and_b32 v{mean}, 0xffff0000, v{t0}")
        a(f"v_lshlrev_b32 v{t0}, 16, v{t0}")
        a(f"v_add_f32 v{t0}, 0x3727c5ac, v{t0}")
        a(f"v_cvt_pk_bf16_f32 v{t0}, v{t0}, v{t0}")
        a(f"v_lshlrev_b32 v{t0}, 16, v{t0}")
        a(f"v_sqrt_f32 v{t1}, v{t0}")
        a(f"v_rcp_f32 v{t2}, v{t1}")
        a(f"v_fma_f32 v{t0}, -v{t1}, v{t1}, v{t0}")
        a(f"v_mul_f32 v{t2}, 0.5, v{t2}")
        a(f"v_fmac_f32 v{t1}, v{t0}, v{t2}")
        a(f"v_cvt_pk_bf16_f32 v{t1}, v{t1}, v{t1}")
        a(f"v_lshlrev_b32 v{t1}, 16, v{t1}")
        a(f"v_rcp_f32 v{t2}, v{t1}")
        a(f"v_fma_f32 v{t0}, -v{t1}, v{t2}, 1.0")
        a(f"v_fmac_f32 v{t2}, v{t0}, v{t2}")

    def layernorm(H0, exact):
        G = 48
        G2 = 64

        def unpack(u):
            a(f"v_lshlrev_b32 v{G+2*u}, 16, v{H0+u}")
            a(f"v_and_b32 v{G+2*u+1}, 0xffff0000, v{H0+u}")

        if not exact:
            a(f"v_dot2_f32_bf16 v40, v{H0}, s36, 0")
            a(f"v_dot2_f32_bf16 v41, v{H0}, v{H0}, 0")
            for u in range(1, 8):
                a(f"v_dot2_f32_bf16 v40, v{H0+u}, s36, v40")
                a(f"v_dot2_f32_bf16 v41, v{H0+u}, v{H0+u}, v41")
            unpack(0)
            unpack(1)
            a("v_permlane16_swap_b32 v40, v41")
            a("v_add_f32 v40, v40, v41")
            uu = 2
            for n in (1, 2, 4, 8):
                unpack(uu)
                uu += 1
                a(f"v_add_f32_dpp v40, v40, v40 row_ror:{n} {DPPM}")
            a("v_mov_b32 v41, v40")
            unpack(6)
            unpack(7)
            a("v_permlane16_swap_b32 v40, v41")
            a("v_mul_f32 v40, 0x3b000000, v40")
            a("v_mul_f32 v41, 0x3b000000, v41")
            a("v_fma_f32 v41, -v40, v40, v41")
            a("v_max_f32 v41, 0, v41")
        else:
            def red32(r, u):
                a(f"v_mov_b32 v{u}, v{r}")
                a(f"v_permlane16_swap_b32 v{r}, v{u}")
                a(f"v_add_f32 v{r}, v{r}, v{u}")
                for n in (1, 2, 4, 8):
                    a(f"v_add_f32_dpp v{r}, v{r}, v{r} row_ror:{n} {DPPM}")
            a(f"v_dot2_f32_bf16 v40, v{H0}, s36, 0")
            for u in range(1, 8):
                a(f"v_dot2_f32_bf16 v40, v{H0+u}, s36, v40")
            for u in range(8):
                unpack(u)
            red32(40, 41)
            a("v_mul_f32 v40, 0x3b000000, v40")
            a("v_sub_f32 v42, 0, v40")
            a("v_mov_b32 v43, v42")
            for u in range(8):
                a(f"v_pk_add_f32 v[{G2+2*u}:{G2+2*u+1}], v[{G+2*u}:{G+2*u+1}], v[42:43]")
            a(f"v_pk_mul_f32 v[42:43], v[{G2}:{G2+1}], v[{G2}:{G2+1}]")
            for u in range(1, 8):
                a(f"v_pk_fma_f32 v[42:43], v[{G2+2*u}:{G2+2*u+1}], v[{G2+2*u}:{G2+2*u+1}], v[42:43]")
            a("v_add_f32 v41, v42, v43")
            red32(41, 42)
            a("v_mul_f32 v41, 0x3b000000, v41")
        ln_scalars(41, 40, 42, 43, 44)
        a("v_sub_f32 v40, 0, v40")
        a("v_mov_b32 v41, v40")
        a("v_mov_b32 v45, v44")
        for u in range(8):
            a(f"v_pk_add_f32 v[{G+2*u}:{G+2*u+1}], v[{G+2*u}:{G+2*u+1}], v[40:41]")
        for u in range(8):
            a(f"v_cvt_pk_bf16_f32 v{H0+u}, v{G+2*u}, v{G+2*u+1}")
        for u in range(8):
            unpack(u)
        if not exact:
            for u in range(8):
                a(f"v_pk_mul_f32 v[{G+2*u}:{G+2*u+1}], v[{G+2*u}:{G+2*u+1}], v[44:45]")
            for u in range(8):
                a(f"v_cvt_pk_bf16_f32 v{H0+u}, v{G+2*u}, v{G+2*u+1}")
        else:
            a("v_sub_f32 v42, 0, v43")
            a("v_mov_b32 v43, v42")
            for u in range(8):
                a(f"v_pk_mul_f32 v[{G2+2*u}:{G2+2*u+1}], v[{G+2*u}:{G+2*u+1}], v[44:45]")
            for u in range(8):
                a(f"v_pk_fma_f32 v[{G+2*u}:{G+2*u+1}], v[{G2+2*u}:{G2+2*u+1}], v[42:43], v[{G+2*u}:{G+2*u+1}]")
            for u in range(8):
                a(f"v_pk_fma_f32 v[{G2+2*u}:{G2+2*u+1}], v[{G+2*u}:{G+2*u+1}], v[44:45], v[{G2+2*u}:{G2+2*u+1}]")
            for u in range(8):
                a(f"v_cvt_pk_bf16_f32 v{H0+u}, v{G2+2*u}, v{G2+2*u+1}")

    stamp(0)
    a("s_cmp_ge_u32 s2, 256")
    a("s_cbranch_scc1 L_end")
    a("s_load_dwordx16 s[4:19], s[0:1], 0")
    a("s_load_dwordx8 s[20:27], s[0:1], 64")
    a("s_load_dwordx2 s[28:29], s[0:1], 96")
    a("v_lshrrev_b32 v1, 6, v0")
    a("v_readfirstlane_b32 s3, v1")
    a("v_and_b32 v1, 63, v0")
    a("s_and_b32 s30, s2, 7")
    a("s_lshr_b32 s31, s2, 3")
    a("s_lshr_b32 s32, s31, 4")
    a("s_and_b32 s33, s31, 15")
    a("s_lshr_b32 s34, s31, 1")
    a("s_mul_i32 s35, s30, 14")
    a("s_add_u32 s35, s35, s34")
    a("s_and_b32 s55, s31, 1")
    a("s_cmp_ge_u32 s34, 14")
    a("s_cselect_b32 s36, 2, 1")
    a("s_mul_i32 s55, s55, s36")
    a("s_cmp_ge_u32 s31, 24")
    a("s_cselect_b32 s56, 1, 0")
    a("s_cmp_eq_u32 s55, 0")
    a("s_cselect_b32 s56, s56, 0")
    a("s_and_b32 s57, s34, 3")
    a("s_lshl_b32 s57, s57, 3")
    a("s_add_u32 s57, s57, s30")
    a("s_mov_b32 s62, 100000")
    a("s_mov_b32 s40, 0x05040100")
    a("s_mov_b32 s41, 0x07060302")
    a("v_and_b32 v4, 15, v1")
    a("v_lshrrev_b32 v5, 4, v1")
    a("v_lshlrev_b32 v2, 4, v1")
    for i in range(4):
        a(f"v_mov_b32 v{12+i}, -1")
    a("v_mov_b32 v10, 1")
    a("v_mov_b32 v11, 0")
    a("s_cmp_eq_u32 s3, 0")
    a("s_cbranch_scc1 L_comm")
    a("s_sub_u32 s3, s3, 1")
    a("v_subrev_u32 v0, 64, v0")

    KV = 28
    WO = 60
    W1 = 76
    WQ = 76
    W2 = 84
    FR = 100
    B1 = 7
    T = 120

    a("v_lshrrev_b32 v3, 3, v0")
    a("s_lshr_b32 s38, s31, 3")
    a("s_lshl_b32 s36, s38, 6")
    a("v_add_lshl_u32 v16, v3, s36, 2")
    a("v_lshlrev_b32 v3, 14, v3")
    a("v_and_b32 v6, 7, v0")
    a("v_lshl_add_u32 v3, v6, 4, v3")
    a("s_lshl_b32 s36, s30, 10")
    a("s_and_b32 s37, s31, 7")
    a("s_lshl_b32 s37, s37, 7")
    a("s_add_u32 s36, s36, s37")
    a("s_lshl_b32 s37, s38, 20")
    a("s_add_u32 s36, s36, s37")
    a("v_add_u32 v3, s36, v3")
    a("v_add_u32 v6, 8192, v3")
    a("v_and_b32 v8, 3, v1")
    a("s_lshl_b32 s36, s30, 1")
    a("s_add_u32 s36, s36, s32")
    a("s_lshl_b32 s36, s36, 3")
    a("s_add_u32 s36, s36, s3")
    a("s_lshl_b32 s36, s36, 4")
    a("s_add_u32 s36, s36, s33")
    a("s_lshl_b32 s36, s36, 8")
    a(f"s_add_u32 s36, s36, {OBUF}")
    a("v_lshlrev_b32 v21, 6, v8")
    a("v_lshl_add_u32 v21, v5, 4, v21")
    a("v_add_u32 v21, s36, v21")
    a("s_lshr_b32 s51, s31, 2")
    a("s_and_b32 s52, s34, 1")
    a("s_and_b32 s53, s3, 3")
    a("s_lshr_b32 s50, s3, 2")
    a("s_lshl_b32 s36, s32, 3")
    a("s_add_u32 s36, s36, s30")
    a("s_lshl_b32 s36, s36, 21")
    a("s_lshl_b32 s37, s33, 15")
    a("s_add_u32 s36, s36, s37")
    a("s_lshl_b32 s37, s53, 13")
    a("s_add_u32 s36, s36, s37")
    a("s_add_u32 s54, s36, 0x180000")
    a("s_waitcnt lgkmcnt(0)")
    a(f"global_load_dwordx4 v[{WQ}:{WQ+3}], v3, s[10:11]{nt}")
    a(f"global_load_dwordx4 v[{WQ+4}:{WQ+7}], v6, s[10:11]{nt}")
    a("s_mov_b32 exec_lo, 0x000f000f")
    a("s_mov_b32 exec_hi, 0x000f000f")
    a("global_store_dwordx4 v21, v[12:15], s[28:29] sc1")
    a("s_mov_b64 exec, -1")
    a("s_cmp_eq_u32 s56, 0")
    a("s_cbranch_scc1 L_noredclr")
    a("s_mov_b32 s38, s57")
    a("s_lshl_b32 s36, s38, 13")
    a("s_lshl_b32 s37, s3, 10")
    a("s_add_u32 s36, s36, s37")
    a(f"s_add_u32 s36, s36, {PBUF}")
    a("v_add_u32 v3, s36, v2")
    a("global_store_dwordx4 v3, v[12:15], s[28:29] sc1")
    a("s_lshl_b32 s36, s38, 14")
    a("s_lshl_b32 s37, s3, 11")
    a("s_add_u32 s36, s36, s37")
    a(f"s_add_u32 s36, s36, {YBUF}")
    a("v_add_u32 v3, s36, v2")
    a("global_store_dwordx4 v3, v[12:15], s[28:29] sc1")
    a("global_store_dwordx4 v3, v[12:15], s[28:29] offset:1024 sc1")
    a.label("L_noredclr")
    a("s_barrier")
    a("s_cmp_eq_u32 s50, 0")
    a("s_cbranch_scc0 L_v_addr")
    a("v_lshlrev_b32 v8, 10, v8")
    a("v_bfe_u32 v9, v1, 2, 2")
    a("v_lshl_add_u32 v8, v9, 8, v8")
    a("v_lshl_add_u32 v8, v5, 4, v8")
    a("v_add_u32 v8, s54, v8")
    a("v_add_u32 v9, 4096, v8")

    def ldk(i):
        t, s = i >> 2, i & 3
        a(f"global_load_dwordx4 v[{KV+4*i}:{KV+4*i+3}], v{8+t}, s[6:7] offset:{64*s}{nt}")

    def ldv(e):
        a(f"global_load_dwordx4 v[{KV+4*e}:{KV+4*e+3}], v{8+(e>>2)}, s[8:9] offset:{1024*(e&3)}{nt}")

    for i in range(K0):
        ldk(i)
    a("s_branch L_ln1")
    a.label("L_v_addr")
    a("v_add_u32 v8, s54, v2")
    a("v_add_u32 v9, 4096, v8")
    a.label("L_ln1")
    stamp(1)
    a("v_lshrrev_b32 v6, 1, v5")
    a("v_lshlrev_b32 v6, 8, v6")
    a("v_and_b32 v3, 1, v5")
    a("v_lshl_add_u32 v6, v3, 4, v6")
    a("v_and_b32 v3, 7, v1")
    a("v_lshl_add_u32 v6, v3, 5, v6")
    a("s_lshl_b32 s36, s3, 9")
    a("v_add_u32 v6, s36, v6")
    lds_spin(SY_XN, 1, T)
    XN = T + 24
    assert L_HN % 256 == 0
    a(f"ds_read2st64_b32 v[{XN}:{XN+1}], v16 offset0:{L_HN//256} offset1:{L_HN//256+4}")
    a("s_cmp_eq_u32 s50, 0")
    a("s_cbranch_scc1 L_kw1")
    a("s_waitcnt vmcnt(0)")
    a("s_branch L_p1")
    a.label("L_kw1")
    a(f"s_waitcnt vmcnt({K0})")
    a.label("L_p1")
    stamp(2)
    ACC = T
    WF = T + 16
    for u in range(4):
        a(f"v_perm_b32 v{WF+2*u}, v{WQ+4+u}, v{WQ+u}, s40")
        a(f"v_perm_b32 v{WF+2*u+1}, v{WQ+4+u}, v{WQ+u}, s41")
    a("s_waitcnt lgkmcnt(0)")
    for b in range(2):
        for c in range(8):
            a(f"v_dot2_f32_bf16 v{ACC+b*8+c}, v{WF+c}, v{XN+b}, 0")
    for e in range(8):
        a(f"v_permlane32_swap_b32 v{ACC+e}, v{ACC+8+e}")
    for e in range(4):
        a(f"v_pk_add_f32 v[{ACC+2*e}:{ACC+2*e+1}], v[{ACC+2*e}:{ACC+2*e+1}], v[{ACC+8+2*e}:{ACC+8+2*e+1}]")
    for e in range(4):
        a(f"v_permlane16_swap_b32 v{ACC+e}, v{ACC+4+e}")
    for e in range(2):
        a(f"v_pk_add_f32 v[{ACC+2*e}:{ACC+2*e+1}], v[{ACC+2*e}:{ACC+2*e+1}], v[{ACC+4+2*e}:{ACC+4+2*e+1}]")
    for e in range(4):
        a(f"v_add_f32_dpp v{ACC+e}, v{ACC+e}, v{ACC+e} row_ror:8 {DPPM}")
    a("s_mov_b32 exec_lo, 0x00ff00ff")
    a("s_mov_b32 exec_hi, 0x00ff00ff")
    a(f"ds_write_b128 v6, v[{ACC}:{ACC+3}] offset:{L_OL}")
    a("s_mov_b64 exec, -1")
    a("s_waitcnt lgkmcnt(0)")
    a("s_barrier")
    stamp(3)
    lds_spin(SY_QP, 1, T)

    def common_addrs():
        a("v_and_b32 v3, 3, v1")
        a("v_lshrrev_b32 v15, 5, v0")
        a("v_mul_u32_u24 v15, 144, v15")
        a("v_and_b32 v6, 31, v0")
        a("v_lshl_add_u32 v15, v6, 2, v15")
        a("v_lshlrev_b32 v13, 6, v4")
        a("v_and_b32 v13, 0x1c0, v13")
        a("v_lshl_add_u32 v13, v5, 4, v13")
        a("s_lshl_b32 s38, s53, 9")
        a("v_add_u32 v13, s38, v13")
        a("s_mov_b32 s36, 0x%08x" % SCALE)
        a("s_mov_b32 s37, 0x%08x" % LOG2E)

    def weight_loads():
        le = a.newlabel("Lwe")
        a("s_cmp_lg_u32 s55, 0")
        a(f"s_cbranch_scc1 {le}")
        a("s_lshl_b32 s44, s30, 19")
        a("s_lshl_b32 s45, s51, 14")
        a("s_add_u32 s44, s44, s45")
        a("s_lshl_b32 s45, s52, 9")
        a("s_add_u32 s44, s44, s45")
        a("s_lshl_b32 s45, s3, 6")
        a("s_add_u32 s44, s44, s45")
        a("v_lshlrev_b32 v20, 17, v5")
        a("v_bfe_u32 v16, v1, 2, 2")
        a("v_lshl_add_u32 v20, v16, 12, v20")
        a("v_and_b32 v16, 3, v1")
        a("v_lshl_add_u32 v20, v16, 4, v20")
        a("v_add_u32 v20, s44, v20")
        for e in range(4):
            a(f"global_load_dwordx4 v[{WO+4*e}:{WO+4*e+3}], v20, s[12:13] offset:{1024*e}{nt}")
        a.label(le)

    def mlp_loads():
        a("s_mul_i32 s44, s3, 229376")
        a("s_lshl_b32 s45, s35, 5")
        a("s_add_u32 s44, s44, s45")
        a("v_lshrrev_b32 v16, 3, v4")
        a("v_lshl_add_u32 v20, v16, 2, v5")
        a("v_mul_u32_u24 v20, 28672, v20")
        a("v_and_b32 v16, 7, v4")
        a("v_lshl_add_u32 v20, v16, 2, v20")
        a("v_add_u32 v20, s44, v20")
        for e in range(8):
            off = e * 3584
            if off < 4096:
                a(f"global_load_dword v{W1+e}, v20, s[16:17] offset:{off}{nt}")
            else:
                a(f"v_add_u32 v16, {off}, v20")
                a(f"global_load_dword v{W1+e}, v16, s[16:17]{nt}")
        a("s_lshl_b32 s44, s35, 14")
        a("s_lshl_b32 s45, s3, 7")
        a("s_add_u32 s44, s44, s45")
        a("v_lshrrev_b32 v20, 3, v1")
        a("v_lshlrev_b32 v20, 11, v20")
        a("v_and_b32 v16, 7, v1")
        a("v_lshl_add_u32 v20, v16, 4, v20")
        a("v_add_u32 v20, s44, v20")
        for e in range(2):
            a(f"global_load_dwordx4 v[{W2+4*e}:{W2+4*e+3}], v20, s[20:21] offset:{1024*e}{nt}")
        a("v_lshrrev_b32 v16, 3, v1")
        a("v_bfe_u32 v17, v1, 1, 1")
        a("v_lshl_add_u32 v16, v16, 1, v17")
        a("s_lshl_b32 s44, s35, 4")
        a("v_add_lshl_u32 v17, v16, s44, 1")
        a(f"global_load_ushort v{B1}, v17, s[18:19]")

    def sum8(dst, base):
        a(f"v_add_f32 v{dst}, v{base}, v{base+1}")
        for i in range(2, 8):
            a(f"v_add_f32 v{dst}, v{dst}, v{base+i}")

    a("s_cmp_eq_u32 s50, 0")
    a("s_cbranch_scc0 L_vwave")
    for i in range(K0, 8):
        ldk(i)
    common_addrs()
    a("v_and_b32 v6, 3, v4")
    a("v_lshlrev_b32 v12, 4, v6")
    a("s_lshl_b32 s38, s53, 2")
    a("v_add_u32 v14, s38, v12")
    a("v_lshlrev_b32 v6, 8, v6")
    a("v_lshl_add_u32 v6, v5, 4, v6")
    a("v_and_b32 v3, 4, v4")
    a("v_cmp_ne_u32 s[42:43], 0, v3")
    a("s_waitcnt vmcnt(0)")
    stamp(4)
    lds_spin(SY_Q, 1, T)
    stamp(5)
    Q = T
    for s in range(4):
        a(f"ds_read_b128 v[{Q+4*s}:{Q+4*s+3}], v6 offset:{L_Q+64*s}")
    SA = T + 16
    for s in range(4):
        a(f"s_waitcnt lgkmcnt({3-s})")
        for t in range(2):
            c = "0" if s == 0 else f"v[{SA+4*t}:{SA+4*t+3}]"
            k = KV + 16 * t + 4 * s
            a(f"v_mfma_f32_16x16x32_bf16 v[{SA+4*t}:{SA+4*t+3}], v[{k}:{k+3}], v[{Q+4*s}:{Q+4*s+3}], {c}")
    Z = T + 24
    TT = T + 32
    for i in range(4):
        a(f"v_cvt_pk_bf16_f32 v{TT+i}, v{SA+2*i}, v{SA+2*i+1}")
    for i in range(4):
        a(f"v_lshlrev_b32 v{Z+2*i}, 16, v{TT+i}")
        a(f"v_and_b32 v{Z+2*i+1}, 0xffff0000, v{TT+i}")
    for i in range(8):
        a(f"v_mul_f32 v{Z+i}, s36, v{Z+i}")
    for i in range(4):
        a(f"v_cvt_pk_bf16_f32 v{TT+i}, v{Z+2*i}, v{Z+2*i+1}")
    for i in range(4):
        a(f"v_lshlrev_b32 v{Z+2*i}, 16, v{TT+i}")
        a(f"v_and_b32 v{Z+2*i+1}, 0xffff0000, v{TT+i}")
    M = T + 36
    Lr = T + 37
    a(f"v_max3_f32 v{M}, v{Z}, v{Z+1}, v{Z+2}")
    a(f"v_max3_f32 v{M}, v{M}, v{Z+3}, v{Z+4}")
    a(f"v_max3_f32 v{M}, v{M}, v{Z+5}, v{Z+6}")
    a(f"v_max_f32 v{M}, v{M}, v{Z+7}")
    a(f"v_mov_b32 v{TT}, v{M}")
    a(f"v_permlane16_swap_b32 v{M}, v{TT}")
    a(f"v_max_f32 v{M}, v{M}, v{TT}")
    a(f"v_mov_b32 v{TT}, v{M}")
    a(f"v_permlane32_swap_b32 v{M}, v{TT}")
    a(f"v_max_f32 v{M}, v{M}, v{TT}")
    a("s_mov_b64 exec, 15")
    a(f"ds_write_b32 v14, v{M} offset:{L_MX}")
    lds_inc(SY_MX)
    MX = T
    lab = a.newlabel("Lspin")
    a.label(lab)
    a(f"ds_read_b32 v{T+4}, v11 offset:{L_SY+SY_MX}")
    a(f"ds_read_b128 v[{MX}:{MX+3}], v12 offset:{L_MX}")
    a("s_waitcnt lgkmcnt(0)")
    a(f"v_readfirstlane_b32 s38, v{T+4}")
    a("s_cmp_lt_u32 s38, 4")
    a(f"s_cbranch_scc1 {lab}")
    a(f"v_max3_f32 v{M}, v{MX}, v{MX+1}, v{MX+2}")
    a(f"v_max_f32 v{M}, v{M}, v{MX+3}")
    for i in range(8):
        a(f"v_sub_f32 v{Z+i}, v{Z+i}, v{M}")
    for i in range(8):
        a(f"v_mul_f32 v{Z+i}, s37, v{Z+i}")
    for i in range(8):
        a(f"v_exp_f32 v{Z+i}, v{Z+i}")
    PH = T
    PL = T + 4
    for i in range(4):
        a(f"v_cvt_pk_bf16_f32 v{PH+i}, v{Z+2*i}, v{Z+2*i+1}")
    sum8(Lr, Z)
    for i in range(4):
        a(f"v_lshlrev_b32 v{TT+1}, 16, v{PH+i}")
        a(f"v_and_b32 v{TT+2}, 0xffff0000, v{PH+i}")
        a(f"v_sub_f32 v{Z+2*i}, v{Z+2*i}, v{TT+1}")
        a(f"v_sub_f32 v{Z+2*i+1}, v{Z+2*i+1}, v{TT+2}")
    for i in range(4):
        a(f"v_cvt_pk_bf16_f32 v{PL+i}, v{Z+2*i}, v{Z+2*i+1}")
    for i in range(4):
        a(f"v_cndmask_b32 v{PH+i}, v{PH+i}, v{PL+i}, s[42:43]")
    a("s_mov_b32 exec_lo, 0x00ff00ff")
    a("s_mov_b32 exec_hi, 0x00ff00ff")
    a(f"ds_write_b128 v13, v[{PH}:{PH+3}] offset:{L_P}")
    a("s_mov_b64 exec, -1")
    a(f"v_mov_b32 v{TT}, v{Lr}")
    a(f"v_permlane16_swap_b32 v{Lr}, v{TT}")
    a(f"v_add_f32 v{Lr}, v{Lr}, v{TT}")
    a(f"v_mov_b32 v{TT}, v{Lr}")
    a(f"v_permlane32_swap_b32 v{Lr}, v{TT}")
    a(f"v_add_f32 v{Lr}, v{Lr}, v{TT}")
    a("s_mov_b64 exec, 15")
    a(f"ds_write_b32 v14, v{Lr} offset:{L_LS}")
    lds_inc(SY_P)
    stamp(6)
    weight_loads()
    a("s_branch L_b3")
    a.label("L_vwave")
    for e in range(VA):
        ldv(e)
    lds_inc(SY_KI)
    common_addrs()
    a("v_mul_u32_u24 v14, 144, v4")
    a("v_mul_u32_u24 v6, 2304, v5")
    a("v_add_u32 v14, v14, v6")
    a("s_mul_i32 s38, s53, 4608")
    a("v_add_u32 v14, s38, v14")
    if VA < 8:
        lds_spin(SY_KI, 5, T)
        for e in range(VA, 8):
            ldv(e)
    a("s_waitcnt vmcnt(0)")
    stamp(4)
    lds_spin(SY_Q, 1, T)
    weight_loads()
    stamp(5)
    PA = T + 32
    V = KV
    OA = T

    def vperm(e):
        u, par = e >> 1, e & 1
        sel = "s40" if par == 0 else "s41"
        f = FR + 4 * (e & 3)
        for i in range(4):
            a(f"v_perm_b32 v{f+i}, v{V+4*(2*i+1)+u}, v{V+4*(2*i)+u}, {sel}")

    def vmfma(e):
        f = FR + 4 * (e & 3)
        a(f"v_mfma_f32_16x16x32_bf16 v[{OA+4*e}:{OA+4*e+3}], v[{PA}:{PA+3}], v[{f}:{f+3}], 0")

    lab = a.newlabel("Lspin")
    a(f"ds_read_b32 v{T+36}, v11 offset:{L_SY+SY_P}")
    a(f"ds_read_b128 v[{PA}:{PA+3}], v13 offset:{L_P}")
    for e in range(4):
        vperm(e)
    a("s_waitcnt lgkmcnt(0)")
    a(f"v_readfirstlane_b32 s38, v{T+36}")
    a("s_cmp_ge_u32 s38, 4")
    a(f"s_cbranch_scc1 {lab}_ok")
    a.label(lab)
    a(f"ds_read_b32 v{T+36}, v11 offset:{L_SY+SY_P}")
    a(f"ds_read_b128 v[{PA}:{PA+3}], v13 offset:{L_P}")
    a("s_waitcnt lgkmcnt(0)")
    a(f"v_readfirstlane_b32 s38, v{T+36}")
    a("s_cmp_lt_u32 s38, 4")
    a(f"s_cbranch_scc1 {lab}")
    a.label(f"{lab}_ok")
    stamp(6)
    for e in range(4):
        vmfma(e)
        vperm(e + 4)
    for e in range(4, 8):
        vmfma(e)
    a("s_mov_b32 exec_hi, 0")
    for e in range(8):
        o = OA + 4 * e
        a(f"ds_write_b128 v14, v[{o}:{o+3}] offset:{L_OL+16*e}")
    a("s_mov_b32 exec_hi, -1")
    a.label("L_b3")
    a("s_waitcnt lgkmcnt(0)")
    a("s_barrier")
    stamp(7)
    OV = T
    assert L_OL % 256 == 0
    for w in range(4):
        o0 = L_OL // 256 + 18 * w
        a(f"ds_read2st64_b32 v[{OV+2*w}:{OV+2*w+1}], v15 offset0:{o0} offset1:{o0+9}")
    OO = T + 8
    a("s_waitcnt lgkmcnt(2)")
    a(f"v_pk_add_f32 v[{OV}:{OV+1}], v[{OV}:{OV+1}], v[{OV+2}:{OV+3}]")
    a("s_waitcnt lgkmcnt(0)")
    a(f"v_pk_add_f32 v[{OV+4}:{OV+5}], v[{OV+4}:{OV+5}], v[{OV+6}:{OV+7}]")
    a(f"v_pk_add_f32 v[{OV}:{OV+1}], v[{OV}:{OV+1}], v[{OV+4}:{OV+5}]")
    a(f"v_add_f32 v{OO}, v{OV}, v{OV+1}")
    a(f"v_min_u32 v{OO}, -2, v{OO}")
    for i in range(1, 4):
        a(f"v_mov_b32_dpp v{OO+i}, v{OO} row_shl:{4*i} {DPPM}")
    a("s_mov_b32 exec_lo, 0x000f000f")
    a("s_mov_b32 exec_hi, 0x000f000f")
    a(f"global_store_dwordx4 v21, v[{OO}:{OO+3}], s[28:29] sc1")
    a("s_mov_b64 exec, -1")
    stamp(8)
    a("s_cmp_eq_u32 s55, 1")
    a("s_cbranch_scc1 L_mlp")
    a("s_cmp_eq_u32 s55, 2")
    a("s_cbranch_scc1 L_data_end")
    a("v_and_b32 v3, 3, v1")
    a("s_lshl_b32 s44, s30, 1")
    a("s_add_u32 s44, s44, s50")
    a("s_lshl_b32 s45, s44, 3")
    a("s_add_u32 s45, s45, s51")
    a("s_lshl_b32 s45, s45, 12")
    a(f"s_add_u32 s45, s45, {OBUF}")
    a("v_lshlrev_b32 v17, 10, v3")
    a("v_lshrrev_b32 v18, 2, v1")
    a("v_lshl_add_u32 v17, v18, 4, v17")
    a("v_add_u32 v17, s45, v17")
    a("v_lshlrev_b32 v22, 4, v18")
    a("s_lshl_b32 s45, s50, 3")
    a("v_add_u32 v23, s45, v22")
    a("s_lshl_b32 s44, s44, 11")
    a(f"s_add_u32 s44, s44, {MLBUF}")
    a("v_lshlrev_b32 v18, 3, v5")
    a("v_lshl_add_u32 v18, v3, 9, v18")
    a("v_add_u32 v18, s44, v18")
    a("s_lshl_b32 s44, s52, 3")
    a("s_add_u32 s44, s44, s3")
    a("s_lshl_b32 s44, s44, 13")
    a("s_lshl_b32 s45, s30, 3")
    a("s_add_u32 s45, s45, s51")
    a("s_lshl_b32 s45, s45, 7")
    a("s_add_u32 s44, s44, s45")
    a(f"s_add_u32 s44, s44, {PBUF}")
    a("v_lshlrev_b32 v19, 5, v3")
    a("v_and_b32 v3, 1, v5")
    a("v_lshl_add_u32 v19, v3, 4, v19")
    a("v_lshrrev_b32 v3, 5, v1")
    a("v_lshl_add_u32 v19, v3, 17, v19")
    a("v_add_u32 v19, s44, v19")
    a("s_waitcnt vmcnt(1)")
    stamp(11)
    WP = FR
    for pr in range(2):
        for u in range(4):
            for par in range(2):
                sel = "s40" if par == 0 else "s41"
                a(f"v_perm_b32 v{WP+pr*8+2*u+par}, v{WO+(2*pr+1)*4+u}, v{WO+(2*pr)*4+u}, {sel}")
    PO = T
    PM = T + 16
    CK = T + 24
    OP = T + 16
    a("s_cmp_lg_u32 s53, 0")
    a("s_cbranch_scc1 L_opspin")
    masked_poll("L_poll_h2",
                [(f"global_load_dwordx4 v[{PO+4*i}:{PO+4*i+3}], v17, s[28:29] offset:{256*i} sc1", PO + 4 * i, 4) for i in range(4)] +
                [(f"global_load_dwordx2 v[{PM+2*i}:{PM+2*i+1}], v18, s[28:29] offset:{128*i} sc1", PM + 2 * i, 2) for i in range(4)], CK)
    stamp(12)
    X = T + 24
    a(f"v_max3_f32 v{X}, v{PM}, v{PM+2}, v{PM+4}")
    a(f"v_max_f32 v{X}, v{X}, v{PM+6}")
    a(f"v_max_f32_dpp v{X}, v{X}, v{X} quad_perm:[1,0,3,2] {DPPM}")
    a(f"v_max_f32_dpp v{X}, v{X}, v{X} quad_perm:[2,3,0,1] {DPPM}")
    for i in range(4):
        a(f"v_sub_f32 v{PM+2*i}, v{PM+2*i}, v{X}")
    for i in range(4):
        a(f"v_mul_f32 v{PM+2*i}, s37, v{PM+2*i}")
    for i in range(4):
        a(f"v_exp_f32 v{PM+2*i}, v{PM+2*i}")
    LL = T + 25
    OS = T + 26
    a(f"v_mul_f32 v{LL}, v{PM}, v{PM+1}")
    for e in range(4):
        a(f"v_mul_f32 v{OS+e}, v{PM}, v{PO+e}")
    for i in range(1, 4):
        a(f"v_fmac_f32 v{LL}, v{PM+2*i}, v{PM+2*i+1}")
        for e in range(4):
            a(f"v_fmac_f32 v{OS+e}, v{PM+2*i}, v{PO+4*i+e}")
    for qp in ("[1,0,3,2]", "[2,3,0,1]"):
        for r in (LL, OS, OS + 1, OS + 2, OS + 3):
            a(f"v_add_f32_dpp v{r}, v{r}, v{r} quad_perm:{qp} {DPPM}")
    a(f"v_rcp_f32 v{X}, v{LL}")
    for e in range(4):
        a(f"v_mul_f32 v{PO+e}, v{OS+e}, v{X}")
    for e in range(4):
        a(f"v_fma_f32 v{OS+e}, -v{PO+e}, v{LL}, v{OS+e}")
    for e in range(4):
        a(f"v_fmac_f32 v{PO+e}, v{OS+e}, v{X}")
    a(f"v_cvt_pk_bf16_f32 v{OP}, v{PO}, v{PO+1}")
    a(f"v_cvt_pk_bf16_f32 v{OP+1}, v{PO+2}, v{PO+3}")
    a(f"ds_write_b64 v23, v[{OP}:{OP+1}] offset:{L_P1}")
    lds_inc(SY_O)
    a.label("L_opspin")
    a(f"ds_read_b32 v{T}, v11 offset:{L_SY+SY_O}")
    a(f"ds_read_b128 v[{OP}:{OP+3}], v22 offset:{L_P1}")
    a("s_waitcnt lgkmcnt(0)")
    a(f"v_readfirstlane_b32 s38, v{T}")
    a("s_cmp_lt_u32 s38, 3")
    a("s_cbranch_scc1 L_opspin")
    stamp(9)
    AC = T
    for b in range(2):
        for c in range(8):
            a(f"v_dot2_f32_bf16 v{AC+b*8+c}, v{WP+c}, v{OP+2*b}, 0")
    for b in range(2):
        for c in range(8):
            a(f"v_dot2_f32_bf16 v{AC+b*8+c}, v{WP+8+c}, v{OP+2*b+1}, v{AC+b*8+c}")

    def red16(rors):
        for e in range(8):
            a(f"v_permlane32_swap_b32 v{AC+e}, v{AC+8+e}")
        for e in range(4):
            a(f"v_pk_add_f32 v[{AC+2*e}:{AC+2*e+1}], v[{AC+2*e}:{AC+2*e+1}], v[{AC+8+2*e}:{AC+8+2*e+1}]")
        for e in range(4):
            a(f"v_permlane16_swap_b32 v{AC+e}, v{AC+4+e}")
        for e in range(2):
            a(f"v_pk_add_f32 v[{AC+2*e}:{AC+2*e+1}], v[{AC+2*e}:{AC+2*e+1}], v[{AC+4+2*e}:{AC+4+2*e+1}]")
        for n in rors:
            for e in range(4):
                a(f"v_add_f32_dpp v{AC+e}, v{AC+e}, v{AC+e} row_ror:{n} {DPPM}")
        for e in range(4):
            a(f"v_min_u32 v{AC+e}, -2, v{AC+e}")

    red16((4, 8))
    a("s_mov_b32 exec_lo, 0x000f000f")
    a("s_mov_b32 exec_hi, 0x000f000f")
    a(f"global_store_dwordx4 v19, v[{AC}:{AC+3}], s[28:29] sc1")
    a("s_mov_b64 exec, -1")
    stamp(10)
    a("s_branch L_data_end")
    a.label("L_mlp")
    mlp_loads()
    a("v_lshrrev_b32 v14, 3, v1")
    a("v_bfe_u32 v3, v1, 1, 1")
    a("v_lshl_add_u32 v14, v14, 1, v3")
    a("v_lshlrev_b32 v14, 2, v14")
    a("v_bfe_u32 v3, v1, 2, 1")
    a("v_lshl_add_u32 v14, v3, 6, v14")
    a("v_and_b32 v3, 1, v1")
    a("v_lshl_add_u32 v14, v3, 10, v14")
    a(f"v_add_u32 v14, {L_HL}, v14")
    a("v_and_b32 v12, 1, v1")
    a("v_lshlrev_b32 v12, 10, v12")
    a("v_lshl_add_u32 v12, v5, 4, v12")
    a("v_bfe_u32 v3, v1, 1, 1")
    a("v_lshl_add_u32 v12, v3, 6, v12")
    a("s_lshl_b32 s36, s3, 7")
    a("v_add_u32 v12, s36, v12")
    a("v_and_b32 v13, 7, v4")
    a("v_lshlrev_b32 v13, 3, v13")
    a("v_lshrrev_b32 v3, 3, v4")
    a("v_lshl_add_u32 v13, v3, 7, v13")
    a("s_lshl_b32 s36, s3, 8")
    a(f"s_add_u32 s36, s36, {L_HL}")
    a("v_add_u32 v13, s36, v13")
    a("v_cmp_ne_u32 s[42:43], 0, v3")
    a("v_bfe_u32 v15, v1, 2, 1")
    a("v_lshrrev_b32 v3, 5, v1")
    a("v_lshl_add_u32 v15, v3, 4, v15")
    a("s_lshl_b32 s36, s3, 1")
    a("v_add_lshl_u32 v15, v15, s36, 14")
    a("v_and_b32 v3, 3, v1")
    a("v_lshl_add_u32 v15, v3, 5, v15")
    a("v_and_b32 v3, 1, v5")
    a("v_lshl_add_u32 v15, v3, 4, v15")
    a("s_lshl_b32 s36, s35, 7")
    a(f"s_add_u32 s36, s36, {YBUF}")
    a("v_add_u32 v15, s36, v15")
    a("s_mov_b32 s36, 0x3d372713")
    a("s_waitcnt vmcnt(0)")
    B1F = KV
    for par in range(2):
        sel = "s40" if par == 0 else "s41"
        for i in range(4):
            a(f"v_perm_b32 v{B1F+par*4+i}, v{W1+2*i+1}, v{W1+2*i}, {sel}")
    W2P = FR
    for u in range(4):
        for par in range(2):
            sel = "s40" if par == 0 else "s41"
            a(f"v_perm_b32 v{W2P+2*u+par}, v{W2+4+u}, v{W2+u}, {sel}")
    a(f"v_lshlrev_b32 v{B1}, 16, v{B1}")
    stamp(11)
    a("s_barrier")
    stamp(12)
    HF = T
    a(f"ds_read_b128 v[{HF}:{HF+3}], v12 offset:{L_HN}")
    HA = T + 8
    a("s_waitcnt lgkmcnt(0)")
    for par in range(2):
        a(f"v_mfma_f32_16x16x32_bf16 v[{HA+4*par}:{HA+4*par+3}], v[{HF}:{HF+3}], v[{B1F+par*4}:{B1F+par*4+3}], 0")
    for par in range(2):
        for b in range(2):
            a(f"v_cndmask_b32 v{HA+4*par+b}, v{HA+4*par+b}, v{HA+4*par+2+b}, s[42:43]")
    a("s_mov_b64 exec, 0xffff")
    a(f"ds_write2_b32 v13, v{HA}, v{HA+4} offset0:0 offset1:1")
    a(f"ds_write2_b32 v13, v{HA+1}, v{HA+5} offset0:16 offset1:17")
    a("s_mov_b64 exec, -1")
    a("s_waitcnt lgkmcnt(0)")
    a("s_barrier")
    for i in range(4):
        a(f"ds_read2_b32 v[{T+2*i}:{T+2*i+1}], v14 offset0:{64*i} offset1:{64*i+32}")
    a("s_waitcnt lgkmcnt(2)")
    a(f"v_pk_add_f32 v[{T}:{T+1}], v[{T}:{T+1}], v[{T+2}:{T+3}]")
    a("s_waitcnt lgkmcnt(0)")
    a(f"v_pk_add_f32 v[{T+4}:{T+5}], v[{T+4}:{T+5}], v[{T+6}:{T+7}]")
    a(f"v_pk_add_f32 v[{T}:{T+1}], v[{T}:{T+1}], v[{T+4}:{T+5}]")
    H = T + 16
    a(f"v_add_f32 v{H}, v{T}, v{T+1}")
    a(f"v_add_f32_dpp v{H}, v{H}, v{H} quad_perm:[1,0,3,2] {DPPM}")
    a(f"v_cvt_pk_bf16_f32 v{H}, v{H}, v{H}")
    a(f"v_lshlrev_b32 v{H}, 16, v{H}")
    a(f"v_add_f32 v{H}, v{H}, v{B1}")
    a(f"v_cvt_pk_bf16_f32 v{H}, v{H}, v{H}")
    a(f"v_lshlrev_b32 v{H}, 16, v{H}")
    t1, t2 = T + 17, T + 18
    a(f"v_mul_f32 v{t1}, v{H}, v{H}")
    a(f"v_fma_f32 v{t1}, v{t1}, s36, 1.0")
    a(f"v_mul_f32 v{t1}, v{t1}, v{H}")
    a(f"v_mul_f32 v{t1}, 0xc0135761, v{t1}")
    a(f"v_exp_f32 v{t1}, v{t1}")
    a(f"v_add_f32 v{t1}, 1.0, v{t1}")
    a(f"v_rcp_f32 v{t2}, v{t1}")
    a(f"v_mul_f32 v{H}, v{H}, v{t2}")
    a(f"v_mov_b32_dpp v{t1}, v{H} quad_perm:[2,3,0,1] {DPPM}")
    a(f"v_cvt_pk_bf16_f32 v{t2}, v{H}, v{t1}")
    GP = T + 20
    a(f"v_mov_b32_dpp v{t1}, v{t2} quad_perm:[0,0,0,0] {DPPM}")
    a(f"v_mov_b32 v{GP}, v{t1}")
    a(f"v_mov_b32 v{GP+1}, v{t1}")
    a(f"v_mov_b32_dpp v{GP}, v{t1} row_shr:4 row_mask:0xf bank_mask:0xa")
    a(f"v_mov_b32_dpp v{GP+1}, v{t1} row_shl:4 row_mask:0xf bank_mask:0x5")
    for b in range(2):
        for c in range(8):
            a(f"v_dot2_f32_bf16 v{AC+b*8+c}, v{W2P+c}, v{GP+b}, 0")
    red16((8,))
    a("s_mov_b32 exec_lo, 0x00ff00ff")
    a("s_mov_b32 exec_hi, 0x00ff00ff")
    a(f"global_store_dwordx4 v15, v[{AC}:{AC+3}], s[28:29] sc1")
    a("s_mov_b64 exec, -1")
    stamp(13)
    a.label("L_data_end")
    stamp_dump(14)
    a("s_endpgm")

    a.label("L_comm")
    a("s_setprio 3")
    a("s_mov_b32 s3, 8")
    for i in range(4):
        a(f"v_mov_b32 v{28+i}, 0")
    a(f"ds_write_b128 v28, v[28:31] offset:{L_SY}")
    a(f"ds_write_b128 v28, v[28:31] offset:{L_SY+16}")
    a("v_lshlrev_b32 v9, 5, v1")
    a("v_and_b32 v3, 3, v1")
    a("v_and_b32 v7, 7, v1")
    a("s_waitcnt lgkmcnt(0)")
    H0 = 24
    a(f"global_load_dwordx4 v[{H0}:{H0+3}], v9, s[4:5]")
    a(f"global_load_dwordx4 v[{H0+4}:{H0+7}], v9, s[4:5] offset:16")
    a("s_load_dwordx2 s[60:61], s[28:29], 0")
    a("s_lshl_b32 s36, s30, 1")
    a("s_add_u32 s36, s36, s32")
    a("s_lshl_b32 s36, s36, 4")
    a("s_add_u32 s36, s36, s33")
    a("s_lshl_b32 s36, s36, 7")
    a(f"s_add_u32 s36, s36, {MLBUF}")
    a("v_add_u32 v6, s36, v2")
    a("v_lshlrev_b32 v17, 3, v1")
    a("v_add_u32 v17, s36, v17")
    a("s_mov_b64 exec, 3")
    a("global_store_dwordx4 v6, v[12:15], s[28:29] sc1")
    a("s_mov_b64 exec, -1")
    a("s_mov_b32 s39, s57")
    a("v_lshrrev_b32 v18, 3, v1")
    a("v_lshlrev_b32 v18, 12, v18")
    a("v_lshl_add_u32 v18, v7, 3, v18")
    a("s_lshl_b32 s36, s39, 7")
    a("v_add_u32 v19, s36, v18")
    a(f"v_add_u32 v18, {HBUF}, v19")
    a(f"v_add_u32 v19, {FLAGS}, v19")
    a("s_cmp_eq_u32 s56, 0")
    a("s_cbranch_scc1 L_nohclr")
    a("s_mov_b32 exec_lo, 0x55555555")
    a("s_mov_b32 exec_hi, 0x55555555")
    a("global_store_dwordx4 v18, v[12:15], s[28:29] sc1")
    a("s_mov_b64 exec, -1")
    a("s_lshl_b32 s36, s39, 5")
    a("v_lshl_add_u32 v6, v7, 2, v5")
    a("v_add_lshl_u32 v8, v6, s36, 1")
    a("global_load_ushort v20, v8, s[4:5]")
    a("s_and_b32 s36, s36, 511")
    a("v_add_lshl_u32 v8, v6, s36, 1")
    a("global_load_ushort v21, v8, s[22:23]")
    a.label("L_nohclr")
    a("s_barrier")
    a("s_mov_b32 s36, 0x3f803f80")
    a("s_waitcnt vmcnt(0) lgkmcnt(0)")
    layernorm(H0, True)
    a(f"ds_write_b128 v9, v[{H0}:{H0+3}] offset:{L_HN}")
    a(f"ds_write_b128 v9, v[{H0+4}:{H0+7}] offset:{L_HN+16}")
    lds_inc(SY_XN)
    stamp(1)
    a("s_add_u32 s60, s60, 1")
    a("s_addc_u32 s61, s61, 0")
    a("v_mov_b32 v26, s60")
    a("v_mov_b32 v27, s61")
    a("v_lshlrev_b32 v20, 16, v20")
    a("v_lshlrev_b32 v21, 16, v21")
    a("s_lshl_b32 s36, s30, 15")
    a("s_lshl_b32 s37, s31, 9")
    a("s_add_u32 s36, s36, s37")
    a(f"s_add_u32 s36, s36, {QBUF}")
    a("v_lshrrev_b32 v12, 5, v1")
    a("v_lshlrev_b32 v12, 14, v12")
    a("v_and_b32 v6, 31, v1")
    a("v_lshl_add_u32 v12, v6, 4, v12")
    a("v_add_u32 v12, s36, v12")
    a("v_lshlrev_b32 v15, 7, v6")
    a("s_lshl_b32 s38, s30, 12")
    a(f"s_add_u32 s38, s38, {FLAGS}")
    a("v_add_u32 v15, s38, v15")
    a("v_lshlrev_b32 v6, 3, v1")
    a("s_lshl_b32 s38, s30, 15")
    a("s_lshl_b32 s37, s32, 14")
    a("s_add_u32 s38, s38, s37")
    a(f"s_add_u32 s38, s38, {QBUF}")
    a("v_add_u32 v28, s38, v2")
    a("v_add_u32 v29, 4096, v28")
    a("v_add_u32 v30, 8192, v28")
    a("v_add_u32 v31, 12288, v28")
    a("v_lshlrev_b32 v16, 2, v1")
    a("s_barrier")
    stamp(2)
    for w in range(8):
        a(f"ds_read_b64 v[{32+2*w}:{33+2*w}], v6 offset:{L_OL+512*w}")
    a("s_cmp_eq_u32 s56, 0")
    a("s_cbranch_scc1 L_noflag")
    a("s_mov_b32 exec_lo, 0x01010101")
    a("s_mov_b32 exec_hi, 0x01010101")
    a("global_store_dwordx2 v19, v[26:27], s[28:29] sc1")
    a("s_mov_b64 exec, -1")
    a.label("L_noflag")
    a("s_waitcnt lgkmcnt(0)")
    for w in range(4):
        a(f"v_pk_add_f32 v[{32+4*w}:{33+4*w}], v[{32+4*w}:{33+4*w}], v[{34+4*w}:{35+4*w}]")
    a("v_pk_add_f32 v[32:33], v[32:33], v[36:37]")
    a("v_pk_add_f32 v[40:41], v[40:41], v[44:45]")
    a("v_pk_add_f32 v[24:25], v[32:33], v[40:41]")
    a("global_store_dwordx4 v12, v[24:27], s[28:29] sc1")
    lds_inc(SY_QP)
    stamp(3)

    def pipelined_poll(name, nset, nload, issue, check, done, sl):
        for k in range(nset - 1):
            issue(k)
            if sl:
                a(f"s_sleep {sl}")
        a.label(name)
        for k in range(nset):
            issue((k + nset - 1) % nset)
            a(f"s_waitcnt vmcnt({nload*(nset-1)})")
            check(k)
            a(f"s_cbranch_vccz {name}_ok{k}")
            if sl:
                a(f"s_sleep {sl}")
        a("s_sub_u32 s62, s62, 1")
        a("s_cmp_gt_i32 s62, 0")
        a(f"s_cbranch_scc1 {name}")
        for k in range(nset):
            a.label(f"{name}_ok{k}")
            done(k)
            if k < nset - 1:
                a(f"s_branch {name}_done")
        a.label(f"{name}_done")

    def qissue(k):
        b = 32 + 64 * k
        for ks in range(4):
            for i in range(4):
                r = b + 16 * ks + 4 * i
                a(f"global_load_dwordx4 v[{r}:{r+3}], v{28+ks}, s[28:29] offset:{1024*i} sc1")

    def qcheck(k):
        b = 32 + 64 * k
        a(f"v_cmp_ne_u64 vcc, s[60:61], v[{b+2}:{b+3}]")
        for n in range(1, 16):
            a(f"v_cmp_ne_u64 s[{44+2*(n&3)}:{45+2*(n&3)}], s[60:61], v[{b+4*n+2}:{b+4*n+3}]")
            a(f"s_or_b64 vcc, vcc, s[{44+2*(n&3)}:{45+2*(n&3)}]")

    def qdone(k):
        b = 32 + 64 * k
        for i in range(4):
            r = b + 4 * i
            a(f"v_pk_add_f32 v[{r}:{r+1}], v[{r}:{r+1}], v[{r+16}:{r+17}]")
            a(f"v_pk_add_f32 v[{r+32}:{r+33}], v[{r+32}:{r+33}], v[{r+48}:{r+49}]")
        for i in range(4):
            r = b + 4 * i
            a(f"v_pk_add_f32 v[{r}:{r+1}], v[{r}:{r+1}], v[{r+32}:{r+33}]")
        for i in range(4):
            r = b + 4 * i
            a(f"v_cvt_pk_bf16_f32 v{r}, v{r}, v{r+1}")
        for i in range(4):
            r = b + 4 * i
            a(f"ds_write_b32 v16, v{r} offset:{L_Q+256*i}")

    lds_spin(SY_KI, 4, 24)
    if pdelay > 1:
        a(f"s_sleep {pdelay}")
    if VA < 8:
        qissue(0)
        lds_inc(SY_KI)
        a("s_waitcnt vmcnt(0)")
        qcheck(0)
        a("s_cbranch_vccz L_poll_q_ok0")
    pipelined_poll("L_poll_q", NSET, 16, qissue, qcheck, qdone, psl)
    lds_inc(SY_Q)
    stamp(4)
    a("v_lshlrev_b32 v13, 4, v3")
    lds_spin(SY_P, 4, 32)
    a(f"ds_read_b128 v[32:35], v13 offset:{L_MX}")
    a(f"ds_read_b128 v[36:39], v13 offset:{L_LS}")
    a("s_waitcnt lgkmcnt(0)")
    a("v_max3_f32 v24, v32, v33, v34")
    a("v_max_f32 v24, v24, v35")
    a("v_min_u32 v24, -2, v24")
    a("v_pk_add_f32 v[36:37], v[36:37], v[38:39]")
    a("v_add_f32 v25, v36, v37")
    a("v_min_u32 v25, -2, v25")
    a("s_mov_b64 exec, 15")
    a("global_store_dwordx2 v17, v[24:25], s[28:29] sc1")
    a("s_mov_b64 exec, -1")
    stamp(6)
    a("s_barrier")
    a("s_cmp_eq_u32 s55, 2")
    a("s_cbranch_scc1 L_comm_end")
    a.label("L_poll_f")
    a("global_load_dwordx2 v[24:25], v15, s[28:29] sc1")
    a("s_waitcnt vmcnt(0)")
    a("v_cmp_ne_u64 vcc, s[60:61], v[24:25]")
    poll_end("L_poll_f")
    lds_inc(SY_O)
    stamp(5)
    a("s_cmp_eq_u32 s55, 1")
    a("s_cbranch_scc1 L_comm_mlp")
    a("s_cmp_eq_u32 s56, 0")
    a("s_cbranch_scc1 L_comm_end")
    a("s_mov_b32 s36, s57")
    a("s_lshl_b32 s37, s36, 13")
    a(f"s_add_u32 s38, s37, {PBUF}")
    a("v_add_u32 v12, s38, v2")
    a("v_add_u32 v13, 4096, v12")
    a("s_lshl_b32 s37, s36, 14")
    a(f"s_add_u32 s38, s37, {YBUF}")
    a("v_add_u32 v14, s38, v2")
    a("v_add_u32 v15, 4096, v14")
    a("v_add_u32 v16, 8192, v14")
    a("v_add_u32 v17, 12288, v14")
    a("s_lshl_b32 s37, s36, 6")
    a("v_lshlrev_b32 v19, 3, v7")
    a("v_add_u32 v19, s37, v19")
    a("s_waitcnt vmcnt(0)")

    def pk(d, s):
        a(f"v_pk_add_f32 v[{d}:{d+1}], v[{d}:{d+1}], v[{s}:{s+1}]")
        a(f"v_pk_add_f32 v[{d+2}:{d+3}], v[{d+2}:{d+3}], v[{s+2}:{s+3}]")

    def tree(base, n):
        idx = [base + 4 * i for i in range(n)]
        while len(idx) > 2:
            nxt = []
            for i in range(0, len(idx) - 1, 2):
                pk(idx[i], idx[i + 1])
                nxt.append(idx[i])
            if len(idx) % 2:
                nxt.append(idx[-1])
            idx = nxt
        a(f"v_pk_add_f32 v[24:25], v[{idx[0]}:{idx[0]+1}], v[{idx[1]}:{idx[1]+1}]")
        a(f"v_pk_add_f32 v[26:27], v[{idx[0]+2}:{idx[0]+3}], v[{idx[1]+2}:{idx[1]+3}]")

    def red_tail():
        a("v_permlane32_swap_b32 v24, v26")
        a("v_permlane32_swap_b32 v25, v27")
        a("v_pk_add_f32 v[24:25], v[24:25], v[26:27]")
        a("v_permlane16_swap_b32 v24, v25")
        a("v_add_f32 v24, v24, v25")
        a(f"v_add_f32_dpp v24, v24, v24 row_ror:8 {DPPM}")

    def pack_rows(src):
        a(f"v_mov_b32 v24, v{src}")
        a(f"v_mov_b32 v25, v{src}")
        a("v_permlane16_swap_b32 v24, v25")
        a("v_perm_b32 v24, v25, v24, s41")
        a("v_mov_b32 v25, v24")
        a("v_permlane32_swap_b32 v24, v25")

    def widen_pack():
        a(f"v_mov_b32_dpp v26, v24 quad_perm:[1,0,3,2] {DPPM}")
        a(f"v_mov_b32_dpp v27, v25 quad_perm:[1,0,3,2] {DPPM}")

    def mk(n, areg):
        def issue(k):
            b = 32 + 4 * n * k
            for i in range(n):
                a(f"global_load_dwordx4 v[{b+4*i}:{b+4*i+3}], v{areg+(i>>2)}, s[28:29] offset:{1024*(i&3)} sc1")

        def check(k):
            check_sentinel(32 + 4 * n * k, 4 * n, 28)

        def done(k):
            tree(32 + 4 * n * k, n)
        return issue, check, done

    masked_poll("L_poll_p", [(f"global_load_dwordx4 v[{32+4*i}:{35+4*i}], v{12+(i>>2)}, s[28:29] offset:{1024*(i&3)} sc1", 32 + 4 * i, 4) for i in range(8)], 28)
    tree(32, 8)
    stamp(7)
    red_tail()
    a("v_cvt_pk_bf16_f32 v24, v24, v24")
    a("v_lshlrev_b32 v24, 16, v24")
    a("v_add_f32 v24, v24, v20")
    a("v_cvt_pk_bf16_f32 v24, v24, v24")
    a("v_lshlrev_b32 v22, 16, v24")
    pack_rows(22)
    a("v_min_u32 v24, -2, v24")
    a("v_min_u32 v25, -2, v25")
    widen_pack()
    a("s_mov_b32 exec_lo, 0x55555555")
    a("s_mov_b32 exec_hi, 0x55555555")
    a("global_store_dwordx4 v18, v[24:27], s[28:29] sc1")
    a("s_mov_b64 exec, -1")
    stamp(8)
    a("s_cmp_lg_u32 s57, 0")
    a("s_cbranch_scc1 L_noepoch")
    a("v_mov_b32 v28, s60")
    a("v_mov_b32 v29, s61")
    a("s_mov_b64 exec, 1")
    a("global_store_dwordx2 v11, v[28:29], s[28:29] sc1")
    a("s_mov_b64 exec, -1")
    a.label("L_noepoch")
    a("s_waitcnt vmcnt(0)")
    masked_poll("L_poll_y", [(f"global_load_dwordx4 v[{32+4*i}:{35+4*i}], v{14+(i>>2)}, s[28:29] offset:{1024*(i&3)} sc1", 32 + 4 * i, 4) for i in range(14)], 28)
    tree(32, 14)
    stamp(9)
    red_tail()
    a("v_cvt_pk_bf16_f32 v24, v24, v24")
    a("v_lshlrev_b32 v24, 16, v24")
    a("v_add_f32 v24, v24, v21")
    a("v_cvt_pk_bf16_f32 v24, v24, v24")
    a("v_lshlrev_b32 v24, 16, v24")
    a("v_add_f32 v24, v24, v22")
    a("v_cvt_pk_bf16_f32 v24, v24, v24")
    a("v_lshlrev_b32 v23, 16, v24")
    pack_rows(23)
    widen_pack()
    a("s_mov_b64 exec, 0x55")
    a("global_store_dwordx4 v19, v[24:27], s[24:25]")
    a("s_mov_b64 exec, -1")
    stamp(10)
    a("s_branch L_comm_end")
    a.label("L_comm_mlp")
    a("v_lshrrev_b32 v12, 1, v1")
    a("v_lshlrev_b32 v12, 7, v12")
    a("v_and_b32 v14, 1, v1")
    a("v_lshl_add_u32 v12, v14, 5, v12")
    a("s_lshl_b32 s36, s30, 12")
    a(f"s_add_u32 s36, s36, {HBUF}")
    a("v_add_u32 v12, s36, v12")
    a("s_mov_b32 s36, 0x3f803f80")
    a.label("L_poll_h")
    a(f"global_load_dwordx4 v[{H0}:{H0+3}], v12, s[28:29] sc1")
    a(f"global_load_dwordx4 v[{H0+4}:{H0+7}], v12, s[28:29] offset:16 sc1")
    a("s_waitcnt vmcnt(0)")
    check_sentinel(H0, 8, 40)
    poll_end("L_poll_h")
    stamp(7)
    layernorm(H0, False)
    a(f"ds_write_b128 v9, v[{H0}:{H0+3}] offset:{L_HN}")
    a(f"ds_write_b128 v9, v[{H0+4}:{H0+7}] offset:{L_HN+16}")
    a("s_waitcnt lgkmcnt(0)")
    a("s_barrier")
    stamp(8)
    a.label("L_comm_end")
    if dbg:
        a("s_cmp_eq_u32 s56, 0")
        a("s_cbranch_scc1 L_nodbg")
        a("s_cmp_gt_u32 s57, 1")
        a("s_cbranch_scc1 L_nodbg")
        a("s_waitcnt lgkmcnt(0)")
        a("s_lshl_b32 s36, s57, 5")
        a("v_mov_b32 v2, s36")
        a("s_mov_b64 exec, 1")
        for n, i in enumerate(dbgset):
            if i == 0:
                a(f"v_mov_b32 v3, s70")
            else:
                a(f"s_sub_u32 s37, s{70+2*i}, s70")
                a(f"v_mov_b32 v3, s37")
            a(f"global_store_dword v2, v3, s[26:27] offset:{4*n}")
        a("s_mov_b64 exec, -1")
        a.label("L_nodbg")
    stamp_dump(14)
    a.label("L_end")
    a("s_endpgm")

    R('.section .rodata,"a"')
    R(".p2align 6")
    R(f".amdhsa_kernel {NAME}_kernel")
    R("  .amdhsa_next_free_vgpr 160")
    R("  .amdhsa_next_free_sgpr 102")
    R("  .amdhsa_accum_offset 160")
    R("  .amdhsa_group_segment_fixed_size 0")
    R("  .amdhsa_kernarg_size 104")
    R("  .amdhsa_user_sgpr_count 2")
    R("  .amdhsa_user_sgpr_kernarg_segment_ptr 1")
    R("  .amdhsa_system_sgpr_workgroup_id_x 1")
    R("  .amdhsa_float_denorm_mode_32 3")
    R(".end_amdhsa_kernel")
    return a.text()


if __name__ == "__main__":
    out = sys.argv[1] if len(sys.argv) > 1 else "k.s"
    kw = {}
    for arg in sys.argv[2:]:
        if arg == "stamps":
            kw["stamps"] = True
        else:
            k, v = arg.split("=")
            kw[k] = int(v)
    open(out, "w").write(gen(**kw))
```

```python
import sys
from asmlib import Asm

NAME = "sequential_preLN__sliding_block_cached__dense_activation_gelu__decode"

EPOCH = 0
FLAGS = 32768
QBUF = 262144
MLBUF = 131072
HBUF = 196608
OBUF = 1 << 20
PBUF = OBUF + (512 << 10)
YBUF = OBUF + (768 << 10)
STAMP = 8 << 20

L_P1 = 0
L_Q = 1024
L_MX = 512
L_LS = 640
L_SY = 2176
SY_Q, SY_MX, SY_P, SY_O, SY_R, SY_KI, SY_XN, SY_QP, SY_VI, SY_PI, SY_Y, SY_R2 = 0, 4, 8, 12, 16, 20, 24, 28, 32, 36, 40, 44
L_HL = 2304
L_HN = 4352
L_OL = 6400
L_P = L_OL + 8 * 2304
L_TOTAL = L_P + 2048

NMLP = 112
RED0 = 224
LOG2E = 0x3FB8AA3B
SCALE = 0x3DB504F3
DPPM = "row_mask:0xf bank_mask:0xf"


def gen(stamps=False, ysl=45, VL=8, vwait=0, ipf=0):
    nt = " nt"
    a = Asm()
    R = a.raw
    R(f"; @launch grid=(256,1,1) block=(576,1,1) lds={L_TOTAL}")
    R('.amdgcn_target "amdgcn-amd-amdhsa--gfx950"')
    R(".text")
    R(f".globl {NAME}_kernel")
    R(".p2align 8")
    R(f".type {NAME}_kernel,@function")
    R(f"{NAME}_kernel:")

    def stamp(i):
        if stamps:
            a(f"s_memrealtime s[{70+2*i}:{71+2*i}]")

    def stamp_dump(n):
        if not stamps:
            return
        a("s_waitcnt lgkmcnt(0)")
        a("s_lshl_b32 s36, s2, 4")
        a("s_add_u32 s36, s36, s3")
        a("s_lshl_b32 s36, s36, 6")
        a(f"s_add_u32 s36, s36, {STAMP}")
        a("v_mov_b32 v2, s36")
        a("s_mov_b64 exec, 1")
        for i in range(n):
            a(f"v_mov_b32 v3, s{70+2*i}")
            a(f"global_store_dword v2, v3, s[28:29] offset:{4*i}")
        a("s_mov_b64 exec, -1")

    def poll_end(lab):
        a(f"s_cbranch_vccz {lab}_ok")
        a("s_sub_u32 s62, s62, 1")
        a("s_cmp_gt_i32 s62, 0")
        a(f"s_cbranch_scc1 {lab}")
        a.label(f"{lab}_ok")

    def check_sentinel(base, n, ck):
        a(f"v_max3_u32 v{ck}, v{base}, v{base+1}, v{base+2}")
        i = 3
        while i < n:
            if i + 1 < n:
                a(f"v_max3_u32 v{ck}, v{ck}, v{base+i}, v{base+i+1}")
            else:
                a(f"v_max_u32 v{ck}, v{ck}, v{base+i}")
            i += 2
        a(f"v_cmp_eq_u32 vcc, -1, v{ck}")

    def masked_poll(name, loads, ck):
        n = len(loads)
        a(f"s_mov_b32 s58, {(1 << n) - 1}")
        a.label(name)
        for i, (txt, base, nr) in enumerate(loads):
            a(f"s_bitcmp0_b32 s58, {i}")
            a(f"s_cbranch_scc1 {name}_s{i}")
            a(txt)
            a.label(f"{name}_s{i}", flush=False)
        a("s_waitcnt vmcnt(0)")
        for i, (txt, base, nr) in enumerate(loads):
            a(f"s_bitcmp0_b32 s58, {i}")
            a(f"s_cbranch_scc1 {name}_c{i}")
            if nr == 4:
                a(f"v_max3_u32 v{ck}, v{base}, v{base+1}, v{base+2}")
                a(f"v_max_u32 v{ck}, v{ck}, v{base+3}")
            else:
                a(f"v_max_u32 v{ck}, v{base}, v{base+1}")
            a(f"v_cmp_eq_u32 vcc, -1, v{ck}")
            a.raw(f"    s_cbranch_vccnz {name}_c{i}")
            a(f"s_bitset0_b32 s58, {i}")
            a.label(f"{name}_c{i}", flush=False)
        a("s_cmp_eq_u32 s58, 0")
        a(f"s_cbranch_scc1 {name}_ok")
        a("s_sub_u32 s62, s62, 1")
        a("s_cmp_gt_i32 s62, 0")
        a(f"s_cbranch_scc1 {name}")
        a.label(f"{name}_ok")

    def lds_spin(off, n, vt):
        lab = a.newlabel("Lspin")
        a.label(lab)
        a(f"ds_read_b32 v{vt}, v11 offset:{L_SY+off}")
        a("s_waitcnt lgkmcnt(0)")
        a(f"v_readfirstlane_b32 s38, v{vt}")
        a(f"s_cmp_lt_u32 s38, {n}")
        a(f"s_cbranch_scc1 {lab}")

    def lds_inc(off):
        a("s_mov_b64 exec, 1")
        a(f"ds_add_u32 v11, v10 offset:{L_SY+off}")
        a("s_mov_b64 exec, -1")

    def ln_scalars(var, mean, t0, t1, t2):
        a(f"v_cvt_pk_bf16_f32 v{t0}, v{var}, v{mean}")
        a(f"v_and_b32 v{mean}, 0xffff0000, v{t0}")
        a(f"v_lshlrev_b32 v{t0}, 16, v{t0}")
        a(f"v_add_f32 v{t0}, 0x3727c5ac, v{t0}")
        a(f"v_cvt_pk_bf16_f32 v{t0}, v{t0}, v{t0}")
        a(f"v_lshlrev_b32 v{t0}, 16, v{t0}")
        a(f"v_sqrt_f32 v{t1}, v{t0}")
        a(f"v_rcp_f32 v{t2}, v{t1}")
        a(f"v_fma_f32 v{t0}, -v{t1}, v{t1}, v{t0}")
        a(f"v_mul_f32 v{t2}, 0.5, v{t2}")
        a(f"v_fmac_f32 v{t1}, v{t0}, v{t2}")
        a(f"v_cvt_pk_bf16_f32 v{t1}, v{t1}, v{t1}")
        a(f"v_lshlrev_b32 v{t1}, 16, v{t1}")
        a(f"v_rcp_f32 v{t2}, v{t1}")
        a(f"v_fma_f32 v{t0}, -v{t1}, v{t2}, 1.0")
        a(f"v_fmac_f32 v{t2}, v{t0}, v{t2}")

    def layernorm(H0, exact):
        G = 48
        G2 = 64

        def unpack(u):
            a(f"v_lshlrev_b32 v{G+2*u}, 16, v{H0+u}")
            a(f"v_and_b32 v{G+2*u+1}, 0xffff0000, v{H0+u}")

        if not exact:
            a(f"v_dot2_f32_bf16 v40, v{H0}, s36, 0")
            a(f"v_dot2_f32_bf16 v41, v{H0}, v{H0}, 0")
            for u in range(1, 8):
                a(f"v_dot2_f32_bf16 v40, v{H0+u}, s36, v40")
                a(f"v_dot2_f32_bf16 v41, v{H0+u}, v{H0+u}, v41")
            unpack(0)
            unpack(1)
            a("v_permlane16_swap_b32 v40, v41")
            a("v_add_f32 v40, v40, v41")
            uu = 2
            for n in (1, 2, 4, 8):
                unpack(uu)
                uu += 1
                a(f"v_add_f32_dpp v40, v40, v40 row_ror:{n} {DPPM}")
            a("v_mov_b32 v41, v40")
            unpack(6)
            unpack(7)
            a("v_permlane16_swap_b32 v40, v41")
            a("v_mul_f32 v40, 0x3b000000, v40")
            a("v_mul_f32 v41, 0x3b000000, v41")
            a("v_fma_f32 v41, -v40, v40, v41")
            a("v_max_f32 v41, 0, v41")
        else:
            def red32(r, u):
                a(f"v_mov_b32 v{u}, v{r}")
                a(f"v_permlane16_swap_b32 v{r}, v{u}")
                a(f"v_add_f32 v{r}, v{r}, v{u}")
                for n in (1, 2, 4, 8):
                    a(f"v_add_f32_dpp v{r}, v{r}, v{r} row_ror:{n} {DPPM}")
            a(f"v_dot2_f32_bf16 v40, v{H0}, s36, 0")
            for u in range(1, 8):
                a(f"v_dot2_f32_bf16 v40, v{H0+u}, s36, v40")
            for u in range(8):
                unpack(u)
            red32(40, 41)
            a("v_mul_f32 v40, 0x3b000000, v40")
            a("v_sub_f32 v42, 0, v40")
            a("v_mov_b32 v43, v42")
            for u in range(8):
                a(f"v_pk_add_f32 v[{G2+2*u}:{G2+2*u+1}], v[{G+2*u}:{G+2*u+1}], v[42:43]")
            a(f"v_pk_mul_f32 v[42:43], v[{G2}:{G2+1}], v[{G2}:{G2+1}]")
            for u in range(1, 8):
                a(f"v_pk_fma_f32 v[42:43], v[{G2+2*u}:{G2+2*u+1}], v[{G2+2*u}:{G2+2*u+1}], v[42:43]")
            a("v_add_f32 v41, v42, v43")
            red32(41, 42)
            a("v_mul_f32 v41, 0x3b000000, v41")
        ln_scalars(41, 40, 42, 43, 44)
        a("v_sub_f32 v40, 0, v40")
        a("v_mov_b32 v41, v40")
        a("v_mov_b32 v45, v44")
        for u in range(8):
            a(f"v_pk_add_f32 v[{G+2*u}:{G+2*u+1}], v[{G+2*u}:{G+2*u+1}], v[40:41]")
        for u in range(8):
            a(f"v_cvt_pk_bf16_f32 v{H0+u}, v{G+2*u}, v{G+2*u+1}")
        for u in range(8):
            unpack(u)
        if not exact:
            for u in range(8):
                a(f"v_pk_mul_f32 v[{G+2*u}:{G+2*u+1}], v[{G+2*u}:{G+2*u+1}], v[44:45]")
            for u in range(8):
                a(f"v_cvt_pk_bf16_f32 v{H0+u}, v{G+2*u}, v{G+2*u+1}")
        else:
            a("v_sub_f32 v42, 0, v43")
            a("v_mov_b32 v43, v42")
            for u in range(8):
                a(f"v_pk_mul_f32 v[{G2+2*u}:{G2+2*u+1}], v[{G+2*u}:{G+2*u+1}], v[44:45]")
            for u in range(8):
                a(f"v_pk_fma_f32 v[{G+2*u}:{G+2*u+1}], v[{G2+2*u}:{G2+2*u+1}], v[42:43], v[{G+2*u}:{G+2*u+1}]")
            for u in range(8):
                a(f"v_pk_fma_f32 v[{G2+2*u}:{G2+2*u+1}], v[{G+2*u}:{G+2*u+1}], v[44:45], v[{G2+2*u}:{G2+2*u+1}]")
            for u in range(8):
                a(f"v_cvt_pk_bf16_f32 v{H0+u}, v{G2+2*u}, v{G2+2*u+1}")

    stamp(0)
    a("s_cmp_ge_u32 s2, 256")
    a("s_cbranch_scc1 L_end")
    a("s_load_dwordx16 s[4:19], s[0:1], 0")
    a("s_load_dwordx8 s[20:27], s[0:1], 64")
    a("s_load_dwordx2 s[28:29], s[0:1], 96")
    a("v_lshrrev_b32 v1, 6, v0")
    a("v_readfirstlane_b32 s3, v1")
    a("v_and_b32 v1, 63, v0")
    a("s_and_b32 s30, s2, 7")
    a("s_lshr_b32 s31, s2, 3")
    a("s_lshr_b32 s32, s31, 4")
    a("s_and_b32 s33, s31, 15")
    a("s_lshr_b32 s34, s31, 1")
    a("s_mul_i32 s35, s30, 14")
    a("s_add_u32 s35, s35, s34")
    a("s_and_b32 s55, s31, 1")
    a("s_cmp_ge_u32 s34, 14")
    a("s_cselect_b32 s36, 2, 1")
    a("s_mul_i32 s55, s55, s36")
    a("s_cmp_ge_u32 s31, 24")
    a("s_cselect_b32 s56, 1, 0")
    a("s_cmp_eq_u32 s55, 0")
    a("s_cselect_b32 s56, s56, 0")
    a("s_and_b32 s57, s34, 3")
    a("s_lshl_b32 s57, s57, 3")
    a("s_add_u32 s57, s57, s30")
    a("s_mov_b32 s62, 100000")
    a("s_mov_b32 s40, 0x05040100")
    a("s_mov_b32 s41, 0x07060302")
    a("v_and_b32 v4, 15, v1")
    a("v_lshrrev_b32 v5, 4, v1")
    a("v_lshlrev_b32 v2, 4, v1")
    for i in range(4):
        a(f"v_mov_b32 v{12+i}, -1")
    a("v_mov_b32 v10, 1")
    a("v_mov_b32 v11, 0")
    a("s_cmp_eq_u32 s3, 0")
    a("s_cbranch_scc1 L_comm")
    a("s_sub_u32 s3, s3, 1")
    a("v_subrev_u32 v0, 64, v0")

    KV = 28
    WO = 60
    W1 = 76
    WQ = 92
    W2 = 84
    FR = 100
    B1 = 7
    T = 132

    a("v_lshrrev_b32 v3, 3, v0")
    a("s_lshr_b32 s38, s31, 3")
    a("s_lshl_b32 s36, s38, 6")
    a("v_add_lshl_u32 v22, v3, s36, 2")
    a("v_lshlrev_b32 v3, 14, v3")
    a("v_and_b32 v6, 7, v0")
    a("v_lshl_add_u32 v3, v6, 4, v3")
    a("s_lshl_b32 s36, s30, 10")
    a("s_and_b32 s37, s31, 7")
    a("s_lshl_b32 s37, s37, 7")
    a("s_add_u32 s36, s36, s37")
    a("s_lshl_b32 s37, s38, 20")
    a("s_add_u32 s36, s36, s37")
    a("v_add_u32 v3, s36, v3")
    a("v_add_u32 v6, 8192, v3")
    a("v_and_b32 v8, 3, v1")
    a("s_lshl_b32 s36, s30, 1")
    a("s_add_u32 s36, s36, s32")
    a("s_lshl_b32 s36, s36, 3")
    a("s_add_u32 s36, s36, s3")
    a("s_lshl_b32 s36, s36, 4")
    a("s_add_u32 s36, s36, s33")
    a("s_lshl_b32 s36, s36, 8")
    a(f"s_add_u32 s36, s36, {OBUF}")
    a("v_lshlrev_b32 v21, 6, v8")
    a("v_lshl_add_u32 v21, v5, 4, v21")
    a("v_add_u32 v21, s36, v21")
    a("s_lshr_b32 s51, s31, 2")
    a("s_and_b32 s52, s34, 1")
    a("s_and_b32 s53, s3, 3")
    a("s_lshr_b32 s50, s3, 2")
    a("s_lshl_b32 s36, s32, 3")
    a("s_add_u32 s36, s36, s30")
    a("s_lshl_b32 s36, s36, 21")
    a("s_lshl_b32 s37, s33, 15")
    a("s_add_u32 s36, s36, s37")
    a("s_lshl_b32 s37, s3, 12")
    a("s_add_u32 s36, s36, s37")
    a("s_add_u32 s54, s36, 0x180000")
    a("s_waitcnt lgkmcnt(0)")
    a(f"global_load_dwordx4 v[{WQ}:{WQ+3}], v3, s[10:11]{nt}")
    a(f"global_load_dwordx4 v[{WQ+4}:{WQ+7}], v6, s[10:11]{nt}")
    a("s_mov_b32 exec_lo, 0x000f000f")
    a("s_mov_b32 exec_hi, 0x000f000f")
    a("global_store_dwordx4 v21, v[12:15], s[28:29] sc1")
    a("s_mov_b64 exec, -1")
    a("s_cmp_eq_u32 s56, 0")
    a("s_cbranch_scc1 L_noredclr")
    a("s_mov_b32 s38, s57")
    a("s_lshl_b32 s36, s38, 13")
    a("s_lshl_b32 s37, s3, 10")
    a("s_add_u32 s36, s36, s37")
    a(f"s_add_u32 s36, s36, {PBUF}")
    a("v_add_u32 v3, s36, v2")
    a("global_store_dwordx4 v3, v[12:15], s[28:29] sc1")
    a("s_lshl_b32 s36, s38, 14")
    a("s_lshl_b32 s37, s3, 11")
    a("s_add_u32 s36, s36, s37")
    a(f"s_add_u32 s36, s36, {YBUF}")
    a("v_add_u32 v3, s36, v2")
    a("global_store_dwordx4 v3, v[12:15], s[28:29] sc1")
    a("global_store_dwordx4 v3, v[12:15], s[28:29] offset:1024 sc1")
    a.label("L_noredclr")
    def weight_loads():
        le = a.newlabel("Lwe")
        a("s_cmp_lg_u32 s55, 0")
        a(f"s_cbranch_scc1 {le}")
        a("s_lshl_b32 s44, s30, 19")
        a("s_lshl_b32 s45, s51, 14")
        a("s_add_u32 s44, s44, s45")
        a("s_lshl_b32 s45, s52, 9")
        a("s_add_u32 s44, s44, s45")
        a("s_lshl_b32 s45, s3, 6")
        a("s_add_u32 s44, s44, s45")
        a("v_lshlrev_b32 v20, 17, v5")
        a("v_bfe_u32 v16, v1, 2, 2")
        a("v_lshl_add_u32 v20, v16, 12, v20")
        a("v_and_b32 v16, 3, v1")
        a("v_lshl_add_u32 v20, v16, 4, v20")
        a("v_add_u32 v20, s44, v20")
        for e in range(4):
            a(f"global_load_dwordx4 v[{WO+4*e}:{WO+4*e+3}], v20, s[12:13] offset:{1024*e}{nt}")
        a.label(le)

    def mlp_loads():
        a("s_mul_i32 s44, s3, 229376")
        a("s_lshl_b32 s45, s35, 5")
        a("s_add_u32 s44, s44, s45")
        a("v_lshrrev_b32 v16, 3, v4")
        a("v_lshl_add_u32 v20, v16, 2, v5")
        a("v_mul_u32_u24 v20, 28672, v20")
        a("v_and_b32 v16, 7, v4")
        a("v_lshl_add_u32 v20, v16, 2, v20")
        a("v_add_u32 v20, s44, v20")
        for e in range(8):
            off = e * 3584
            if off < 4096:
                a(f"global_load_dword v{W1+e}, v20, s[16:17] offset:{off}{nt}")
            else:
                a(f"v_add_u32 v16, {off}, v20")
                a(f"global_load_dword v{W1+e}, v16, s[16:17]{nt}")
        a("s_lshl_b32 s44, s35, 14")
        a("s_lshl_b32 s45, s3, 7")
        a("s_add_u32 s44, s44, s45")
        a("v_lshrrev_b32 v20, 3, v1")
        a("v_lshlrev_b32 v20, 11, v20")
        a("v_and_b32 v16, 7, v1")
        a("v_lshl_add_u32 v20, v16, 4, v20")
        a("v_add_u32 v20, s44, v20")
        for e in range(2):
            a(f"global_load_dwordx4 v[{W2+4*e}:{W2+4*e+3}], v20, s[20:21] offset:{1024*e}{nt}")
        a("v_lshrrev_b32 v16, 3, v1")
        a("v_bfe_u32 v17, v1, 1, 1")
        a("v_lshl_add_u32 v16, v16, 1, v17")
        a("s_lshl_b32 s44, s35, 4")
        a("v_add_lshl_u32 v17, v16, s44, 1")
        a(f"global_load_ushort v{B1}, v17, s[18:19]")

    a("s_barrier")
    a("v_lshlrev_b32 v8, 10, v8")
    a("v_bfe_u32 v9, v1, 2, 2")
    a("v_lshl_add_u32 v8, v9, 8, v8")
    a("v_lshl_add_u32 v8, v5, 4, v8")
    a("v_add_u32 v8, s54, v8")
    a("v_add_u32 v9, s54, v2")
    K = KV
    V = KV + 16
    for i in range(4):
        a(f"global_load_dwordx4 v[{K+4*i}:{K+4*i+3}], v8, s[6:7] offset:{64*i}{nt}")
    stamp(1)
    a("v_lshrrev_b32 v6, 1, v5")
    a("v_lshlrev_b32 v6, 8, v6")
    a("v_and_b32 v3, 1, v5")
    a("v_lshl_add_u32 v6, v3, 4, v6")
    a("v_and_b32 v3, 7, v1")
    a("v_lshl_add_u32 v6, v3, 5, v6")
    a("s_lshl_b32 s36, s3, 9")
    a("v_add_u32 v6, s36, v6")
    lds_spin(SY_XN, 1, T)
    XN = T + 24
    assert L_HN % 256 == 0
    a(f"ds_read2st64_b32 v[{XN}:{XN+1}], v22 offset0:{L_HN//256} offset1:{L_HN//256+4}")
    a("s_waitcnt vmcnt(4)")
    a.label("L_p1")
    stamp(2)
    ACC = T
    WF = T + 16
    for u in range(4):
        a(f"v_perm_b32 v{WF+2*u}, v{WQ+4+u}, v{WQ+u}, s40")
        a(f"v_perm_b32 v{WF+2*u+1}, v{WQ+4+u}, v{WQ+u}, s41")
    a("s_waitcnt lgkmcnt(0)")
    for b in range(2):
        for c in range(8):
            a(f"v_dot2_f32_bf16 v{ACC+b*8+c}, v{WF+c}, v{XN+b}, 0")
    for e in range(8):
        a(f"v_permlane32_swap_b32 v{ACC+e}, v{ACC+8+e}")
    for e in range(4):
        a(f"v_pk_add_f32 v[{ACC+2*e}:{ACC+2*e+1}], v[{ACC+2*e}:{ACC+2*e+1}], v[{ACC+8+2*e}:{ACC+8+2*e+1}]")
    for e in range(4):
        a(f"v_permlane16_swap_b32 v{ACC+e}, v{ACC+4+e}")
    for e in range(2):
        a(f"v_pk_add_f32 v[{ACC+2*e}:{ACC+2*e+1}], v[{ACC+2*e}:{ACC+2*e+1}], v[{ACC+4+2*e}:{ACC+4+2*e+1}]")
    for e in range(4):
        a(f"v_add_f32_dpp v{ACC+e}, v{ACC+e}, v{ACC+e} row_ror:8 {DPPM}")
    a("s_mov_b32 exec_lo, 0x00ff00ff")
    a("s_mov_b32 exec_hi, 0x00ff00ff")
    a(f"ds_write_b128 v6, v[{ACC}:{ACC+3}] offset:{L_OL}")
    a("s_mov_b64 exec, -1")
    a("s_waitcnt lgkmcnt(0)")
    a("s_barrier")
    stamp(3)

    def common_addrs():
        a("v_and_b32 v3, 3, v1")
        a("v_lshrrev_b32 v15, 5, v0")
        a("v_mul_u32_u24 v15, 144, v15")
        a("v_and_b32 v6, 31, v0")
        a("v_lshl_add_u32 v15, v6, 2, v15")
        a("s_mov_b32 s36, 0x%08x" % SCALE)
        a("s_mov_b32 s37, 0x%08x" % LOG2E)

    def sum8(dst, base):
        a(f"v_add_f32 v{dst}, v{base}, v{base+1}")
        for i in range(2, 8):
            a(f"v_add_f32 v{dst}, v{dst}, v{base+i}")

    lds_spin(SY_QP, 1, T)
    for e in range(4):
        a(f"global_load_dwordx4 v[{V+4*e}:{V+4*e+3}], v9, s[8:9] offset:{1024*e}{nt}")
    common_addrs()
    a("v_and_b32 v6, 3, v4")
    a("v_lshlrev_b32 v12, 5, v6")
    a("s_lshl_b32 s38, s3, 2")
    a("v_add_u32 v13, s38, v12")
    a("v_lshlrev_b32 v6, 8, v6")
    a("v_lshl_add_u32 v6, v5, 4, v6")
    a("v_mul_u32_u24 v14, 144, v4")
    a("s_mul_i32 s38, s3, 2304")
    a("v_add_u32 v14, s38, v14")
    a(f"s_waitcnt vmcnt({vwait})")
    stamp(4)
    lds_inc(SY_VI)
    lds_spin(SY_PI, 1, T)
    weight_loads()
    a("s_cmp_lg_u32 s55, 1")
    a("s_cbranch_scc1 L_nomlpw")
    mlp_loads()
    a.label("L_nomlpw")
    if vwait:
        a("s_cmp_eq_u32 s55, 0")
        a("s_cbranch_scc1 L_w0")
        a("s_cmp_eq_u32 s55, 1")
        a("s_cbranch_scc1 L_w1")
        a("s_waitcnt vmcnt(0)")
        a("s_branch L_w2")
        a.label("L_w0")
        a("s_waitcnt vmcnt(4)")
        a("s_branch L_w2")
        a.label("L_w1")
        a("s_waitcnt vmcnt(11)")
        a.label("L_w2")
    for e in range(8):
        u, par = e >> 1, e & 1
        sel = "s40" if par == 0 else "s41"
        f = FR + 4 * e
        a(f"v_perm_b32 v{f}, v{V+4+u}, v{V+u}, {sel}")
        a(f"v_perm_b32 v{f+1}, v{V+12+u}, v{V+8+u}, {sel}")
        a(f"v_perm_b32 v{f+2}, v{V+4+u}, v{V+u}, {sel}")
        a(f"v_perm_b32 v{f+3}, v{V+12+u}, v{V+8+u}, {sel}")
    Q = T
    lab = a.newlabel("Lspin")
    a.label(lab)
    a(f"ds_read_b32 v{T+16}, v11 offset:{L_SY+SY_Q}")
    for s_ in range(4):
        a(f"ds_read_b128 v[{Q+4*s_}:{Q+4*s_+3}], v6 offset:{L_Q+64*s_}")
    a("s_waitcnt lgkmcnt(0)")
    a(f"v_readfirstlane_b32 s38, v{T+16}")
    a("s_cmp_lt_u32 s38, 1")
    a(f"s_cbranch_scc1 {lab}")
    stamp(5)
    SA = T + 16
    for s_ in range(4):
        c = "0" if s_ == 0 else f"v[{SA}:{SA+3}]"
        a(f"v_mfma_f32_16x16x32_bf16 v[{SA}:{SA+3}], v[{K+4*s_}:{K+4*s_+3}], v[{Q+4*s_}:{Q+4*s_+3}], {c}")
    Z = T + 20
    TT = T + 24
    for i in range(2):
        a(f"v_cvt_pk_bf16_f32 v{TT+i}, v{SA+2*i}, v{SA+2*i+1}")
    for i in range(2):
        a(f"v_lshlrev_b32 v{Z+2*i}, 16, v{TT+i}")
        a(f"v_and_b32 v{Z+2*i+1}, 0xffff0000, v{TT+i}")
    for i in range(4):
        a(f"v_mul_f32 v{Z+i}, s36, v{Z+i}")
    for i in range(2):
        a(f"v_cvt_pk_bf16_f32 v{TT+i}, v{Z+2*i}, v{Z+2*i+1}")
    for i in range(2):
        a(f"v_lshlrev_b32 v{Z+2*i}, 16, v{TT+i}")
        a(f"v_and_b32 v{Z+2*i+1}, 0xffff0000, v{TT+i}")
    M = T + 28
    Lr = T + 29
    a(f"v_max3_f32 v{M}, v{Z}, v{Z+1}, v{Z+2}")
    a(f"v_max_f32 v{M}, v{M}, v{Z+3}")
    a(f"v_mov_b32 v{TT}, v{M}")
    a(f"v_permlane16_swap_b32 v{M}, v{TT}")
    a(f"v_max_f32 v{M}, v{M}, v{TT}")
    a(f"v_mov_b32 v{TT}, v{M}")
    a(f"v_permlane32_swap_b32 v{M}, v{TT}")
    a(f"v_max_f32 v{M}, v{M}, v{TT}")
    a("s_mov_b64 exec, 15")
    a(f"ds_write_b32 v13, v{M} offset:{L_MX}")
    lds_inc(SY_MX)
    MX = T
    lab = a.newlabel("Lspin")
    a.label(lab)
    a(f"ds_read_b32 v{T+8}, v11 offset:{L_SY+SY_MX}")
    a(f"ds_read_b128 v[{MX}:{MX+3}], v12 offset:{L_MX}")
    a(f"ds_read_b128 v[{MX+4}:{MX+7}], v12 offset:{L_MX+16}")
    a("s_waitcnt lgkmcnt(0)")
    a(f"v_readfirstlane_b32 s38, v{T+8}")
    a("s_cmp_lt_u32 s38, 8")
    a(f"s_cbranch_scc1 {lab}")
    a(f"v_max3_f32 v{M}, v{MX}, v{MX+1}, v{MX+2}")
    a(f"v_max3_f32 v{TT}, v{MX+3}, v{MX+4}, v{MX+5}")
    a(f"v_max3_f32 v{M}, v{M}, v{MX+6}, v{MX+7}")
    a(f"v_max_f32 v{M}, v{M}, v{TT}")
    for i in range(4):
        a(f"v_sub_f32 v{Z+i}, v{Z+i}, v{M}")
    for i in range(4):
        a(f"v_mul_f32 v{Z+i}, s37, v{Z+i}")
    for i in range(4):
        a(f"v_exp_f32 v{Z+i}, v{Z+i}")
    PA = T + 32
    for i in range(2):
        a(f"v_cvt_pk_bf16_f32 v{PA+i}, v{Z+2*i}, v{Z+2*i+1}")
    for i in range(2):
        a(f"v_lshlrev_b32 v{TT+2*i}, 16, v{PA+i}")
        a(f"v_and_b32 v{TT+2*i+1}, 0xffff0000, v{PA+i}")
    for i in range(4):
        a(f"v_sub_f32 v{TT+i}, v{Z+i}, v{TT+i}")
    for i in range(2):
        a(f"v_cvt_pk_bf16_f32 v{PA+2+i}, v{TT+2*i}, v{TT+2*i+1}")
    stamp(6)
    OA = KV
    for e in range(8):
        a(f"v_mfma_f32_16x16x32_bf16 v[{OA+4*e}:{OA+4*e+3}], v[{PA}:{PA+3}], v[{FR+4*e}:{FR+4*e+3}], 0")
        if e == 0:
            a(f"v_add_f32 v{Lr}, v{Z}, v{Z+1}")
            a(f"v_add_f32 v{TT}, v{Z+2}, v{Z+3}")
        if e == 1:
            a(f"v_add_f32 v{Lr}, v{Lr}, v{TT}")
            a(f"v_mov_b32 v{TT}, v{Lr}")
        if e == 2:
            a(f"v_permlane16_swap_b32 v{Lr}, v{TT}")
            a(f"v_add_f32 v{Lr}, v{Lr}, v{TT}")
        if e == 3:
            a(f"v_mov_b32 v{TT}, v{Lr}")
        if e == 4:
            a(f"v_permlane32_swap_b32 v{Lr}, v{TT}")
            a(f"v_add_f32 v{Lr}, v{Lr}, v{TT}")
    a("s_mov_b64 exec, 15")
    a(f"ds_write_b32 v13, v{Lr} offset:{L_LS}")
    a("s_mov_b64 exec, 0xffff")
    for e in range(8):
        o = OA + 4 * e
        a(f"ds_write_b128 v14, v[{o}:{o+3}] offset:{L_OL+16*e}")
    a("s_mov_b64 exec, -1")
    a.label("L_b3")
    a("s_waitcnt lgkmcnt(0)")
    a("s_barrier")
    stamp(7)
    OV = T
    assert L_OL % 256 == 0
    for w in range(4):
        o0 = L_OL // 256 + 18 * w
        a(f"ds_read2st64_b32 v[{OV+2*w}:{OV+2*w+1}], v15 offset0:{o0} offset1:{o0+9}")
    OO = T + 8
    a("s_waitcnt lgkmcnt(2)")
    a(f"v_pk_add_f32 v[{OV}:{OV+1}], v[{OV}:{OV+1}], v[{OV+2}:{OV+3}]")
    a("s_waitcnt lgkmcnt(0)")
    a(f"v_pk_add_f32 v[{OV+4}:{OV+5}], v[{OV+4}:{OV+5}], v[{OV+6}:{OV+7}]")
    a(f"v_pk_add_f32 v[{OV}:{OV+1}], v[{OV}:{OV+1}], v[{OV+4}:{OV+5}]")
    a(f"v_add_f32 v{OO}, v{OV}, v{OV+1}")
    a(f"v_min_u32 v{OO}, -2, v{OO}")
    for i in range(1, 4):
        a(f"v_mov_b32_dpp v{OO+i}, v{OO} row_shl:{4*i} {DPPM}")
    a("s_mov_b32 exec_lo, 0x000f000f")
    a("s_mov_b32 exec_hi, 0x000f000f")
    a(f"global_store_dwordx4 v21, v[{OO}:{OO+3}], s[28:29] sc1")
    a("s_mov_b64 exec, -1")
    stamp(8)
    a("s_cmp_eq_u32 s55, 1")
    a("s_cbranch_scc1 L_mlp")
    a("s_cmp_eq_u32 s55, 2")
    a("s_cbranch_scc1 L_data_end")
    a("v_and_b32 v3, 3, v1")
    a("s_lshl_b32 s44, s30, 1")
    a("s_add_u32 s44, s44, s50")
    a("s_lshl_b32 s45, s44, 3")
    a("s_add_u32 s45, s45, s51")
    a("s_lshl_b32 s45, s45, 12")
    a(f"s_add_u32 s45, s45, {OBUF}")
    a("v_lshlrev_b32 v17, 10, v3")
    a("v_lshrrev_b32 v18, 2, v1")
    a("v_lshl_add_u32 v17, v18, 4, v17")
    a("v_add_u32 v17, s45, v17")
    a("v_lshlrev_b32 v22, 4, v18")
    a("s_lshl_b32 s45, s50, 3")
    a("v_add_u32 v23, s45, v22")
    a("s_lshl_b32 s44, s44, 11")
    a(f"s_add_u32 s44, s44, {MLBUF}")
    a("v_lshlrev_b32 v18, 3, v5")
    a("v_lshl_add_u32 v18, v3, 9, v18")
    a("v_add_u32 v18, s44, v18")
    a("s_lshl_b32 s44, s52, 3")
    a("s_add_u32 s44, s44, s3")
    a("s_lshl_b32 s44, s44, 13")
    a("s_lshl_b32 s45, s30, 3")
    a("s_add_u32 s45, s45, s51")
    a("s_lshl_b32 s45, s45, 7")
    a("s_add_u32 s44, s44, s45")
    a(f"s_add_u32 s44, s44, {PBUF}")
    a("v_lshlrev_b32 v19, 5, v3")
    a("v_and_b32 v3, 1, v5")
    a("v_lshl_add_u32 v19, v3, 4, v19")
    a("v_lshrrev_b32 v3, 5, v1")
    a("v_lshl_add_u32 v19, v3, 17, v19")
    a("v_add_u32 v19, s44, v19")
    a("s_waitcnt vmcnt(1)")
    stamp(11)
    WP = FR
    for pr in range(2):
        for u in range(4):
            for par in range(2):
                sel = "s40" if par == 0 else "s41"
                a(f"v_perm_b32 v{WP+pr*8+2*u+par}, v{WO+(2*pr+1)*4+u}, v{WO+(2*pr)*4+u}, {sel}")
    PO = T
    PM = T + 16
    CK = T + 24
    OP = T + 16
    a("s_cmp_lg_u32 s53, 0")
    a("s_cbranch_scc1 L_opspin")
    masked_poll("L_poll_h2",
                [(f"global_load_dwordx4 v[{PO+4*i}:{PO+4*i+3}], v17, s[28:29] offset:{256*i} sc1", PO + 4 * i, 4) for i in range(4)] +
                [(f"global_load_dwordx2 v[{PM+2*i}:{PM+2*i+1}], v18, s[28:29] offset:{128*i} sc1", PM + 2 * i, 2) for i in range(4)], CK)
    stamp(12)
    X = T + 24
    a(f"v_max3_f32 v{X}, v{PM}, v{PM+2}, v{PM+4}")
    a(f"v_max_f32 v{X}, v{X}, v{PM+6}")
    a(f"v_max_f32_dpp v{X}, v{X}, v{X} quad_perm:[1,0,3,2] {DPPM}")
    a(f"v_max_f32_dpp v{X}, v{X}, v{X} quad_perm:[2,3,0,1] {DPPM}")
    for i in range(4):
        a(f"v_sub_f32 v{PM+2*i}, v{PM+2*i}, v{X}")
    for i in range(4):
        a(f"v_mul_f32 v{PM+2*i}, s37, v{PM+2*i}")
    for i in range(4):
        a(f"v_exp_f32 v{PM+2*i}, v{PM+2*i}")
    LL = T + 25
    OS = T + 26
    a(f"v_mul_f32 v{LL}, v{PM}, v{PM+1}")
    for e in range(4):
        a(f"v_mul_f32 v{OS+e}, v{PM}, v{PO+e}")
    for i in range(1, 4):
        a(f"v_fmac_f32 v{LL}, v{PM+2*i}, v{PM+2*i+1}")
        for e in range(4):
            a(f"v_fmac_f32 v{OS+e}, v{PM+2*i}, v{PO+4*i+e}")
    for qp in ("[1,0,3,2]", "[2,3,0,1]"):
        for r in (LL, OS, OS + 1, OS + 2, OS + 3):
            a(f"v_add_f32_dpp v{r}, v{r}, v{r} quad_perm:{qp} {DPPM}")
    a(f"v_rcp_f32 v{X}, v{LL}")
    for e in range(4):
        a(f"v_mul_f32 v{PO+e}, v{OS+e}, v{X}")
    for e in range(4):
        a(f"v_fma_f32 v{OS+e}, -v{PO+e}, v{LL}, v{OS+e}")
    for e in range(4):
        a(f"v_fmac_f32 v{PO+e}, v{OS+e}, v{X}")
    a(f"v_cvt_pk_bf16_f32 v{OP}, v{PO}, v{PO+1}")
    a(f"v_cvt_pk_bf16_f32 v{OP+1}, v{PO+2}, v{PO+3}")
    a(f"ds_write_b64 v23, v[{OP}:{OP+1}] offset:{L_P1}")
    lds_inc(SY_O)
    a.label("L_opspin")
    a(f"ds_read_b32 v{T}, v11 offset:{L_SY+SY_O}")
    a(f"ds_read_b128 v[{OP}:{OP+3}], v22 offset:{L_P1}")
    a("s_waitcnt lgkmcnt(0)")
    a(f"v_readfirstlane_b32 s38, v{T}")
    a("s_cmp_lt_u32 s38, 3")
    a("s_cbranch_scc1 L_opspin")
    stamp(9)
    AC = T
    for b in range(2):
        for c in range(8):
            a(f"v_dot2_f32_bf16 v{AC+b*8+c}, v{WP+c}, v{OP+2*b}, 0")
    for b in range(2):
        for c in range(8):
            a(f"v_dot2_f32_bf16 v{AC+b*8+c}, v{WP+8+c}, v{OP+2*b+1}, v{AC+b*8+c}")

    def red16(rors):
        for e in range(8):
            a(f"v_permlane32_swap_b32 v{AC+e}, v{AC+8+e}")
        for e in range(4):
            a(f"v_pk_add_f32 v[{AC+2*e}:{AC+2*e+1}], v[{AC+2*e}:{AC+2*e+1}], v[{AC+8+2*e}:{AC+8+2*e+1}]")
        for e in range(4):
            a(f"v_permlane16_swap_b32 v{AC+e}, v{AC+4+e}")
        for e in range(2):
            a(f"v_pk_add_f32 v[{AC+2*e}:{AC+2*e+1}], v[{AC+2*e}:{AC+2*e+1}], v[{AC+4+2*e}:{AC+4+2*e+1}]")
        for n in rors:
            for e in range(4):
                a(f"v_add_f32_dpp v{AC+e}, v{AC+e}, v{AC+e} row_ror:{n} {DPPM}")
        for e in range(4):
            a(f"v_min_u32 v{AC+e}, -2, v{AC+e}")

    red16((4, 8))
    a("s_mov_b32 exec_lo, 0x000f000f")
    a("s_mov_b32 exec_hi, 0x000f000f")
    a(f"global_store_dwordx4 v19, v[{AC}:{AC+3}], s[28:29] sc1")
    a("s_mov_b64 exec, -1")
    stamp(10)
    a("s_cmp_eq_u32 s56, 0")
    a("s_cbranch_scc1 L_data_end")
    a("s_lshl_b32 s44, s57, 13")
    a("s_lshl_b32 s45, s3, 10")
    a("s_add_u32 s44, s44, s45")
    a(f"s_add_u32 s44, s44, {PBUF}")
    a("v_add_u32 v12, s44, v2")
    a("s_lshl_b32 s44, s57, 14")
    a("s_lshl_b32 s45, s3, 11")
    a("s_add_u32 s44, s44, s45")
    a(f"s_add_u32 s44, s44, {YBUF}")
    a("v_add_u32 v13, s44, v2")
    a("v_and_b32 v14, 7, v1")
    a("v_lshl_add_u32 v14, v14, 2, v5")
    a("v_lshlrev_b32 v14, 2, v14")
    a("s_lshl_b32 s45, s3, 7")
    a("v_add_u32 v14, s45, v14")

    def red_wave(ldsoff, sy):
        a(f"v_permlane32_swap_b32 v{T}, v{T+2}")
        a(f"v_permlane32_swap_b32 v{T+1}, v{T+3}")
        a(f"v_pk_add_f32 v[{T}:{T+1}], v[{T}:{T+1}], v[{T+2}:{T+3}]")
        a(f"v_permlane16_swap_b32 v{T}, v{T+1}")
        a(f"v_add_f32 v{T}, v{T}, v{T+1}")
        a(f"v_add_f32_dpp v{T}, v{T}, v{T} row_ror:8 {DPPM}")
        a(f"ds_write_b32 v14, v{T} offset:{ldsoff}")
        lds_inc(sy)

    a.label("L_poll_p")
    a(f"global_load_dwordx4 v[{T}:{T+3}], v12, s[28:29] sc1")
    a("s_waitcnt vmcnt(0)")
    check_sentinel(T, 4, T + 8)
    poll_end("L_poll_p")
    red_wave(L_P, SY_R)
    a("s_cmp_eq_u32 s3, 7")
    a("s_cbranch_scc1 L_data_end")
    lds_spin(SY_Y, 1, T)
    a.label("L_poll_y")
    a(f"global_load_dwordx4 v[{T}:{T+3}], v13, s[28:29] sc1")
    a(f"global_load_dwordx4 v[{T+4}:{T+7}], v13, s[28:29] offset:1024 sc1")
    a("s_waitcnt vmcnt(0)")
    check_sentinel(T, 8, T + 8)
    poll_end("L_poll_y")
    a(f"v_pk_add_f32 v[{T}:{T+1}], v[{T}:{T+1}], v[{T+4}:{T+5}]")
    a(f"v_pk_add_f32 v[{T+2}:{T+3}], v[{T+2}:{T+3}], v[{T+6}:{T+7}]")
    red_wave(L_P + 1024, SY_R2)
    a("s_branch L_data_end")
    a.label("L_mlp")
    a("v_lshrrev_b32 v14, 3, v1")
    a("v_bfe_u32 v3, v1, 1, 1")
    a("v_lshl_add_u32 v14, v14, 1, v3")
    a("v_lshlrev_b32 v14, 2, v14")
    a("v_bfe_u32 v3, v1, 2, 1")
    a("v_lshl_add_u32 v14, v3, 6, v14")
    a("v_and_b32 v3, 1, v1")
    a("v_lshl_add_u32 v14, v3, 10, v14")
    a(f"v_add_u32 v14, {L_HL}, v14")
    a("v_and_b32 v12, 1, v1")
    a("v_lshlrev_b32 v12, 10, v12")
    a("v_lshl_add_u32 v12, v5, 4, v12")
    a("v_bfe_u32 v3, v1, 1, 1")
    a("v_lshl_add_u32 v12, v3, 6, v12")
    a("s_lshl_b32 s36, s3, 7")
    a("v_add_u32 v12, s36, v12")
    a("v_and_b32 v13, 7, v4")
    a("v_lshlrev_b32 v13, 3, v13")
    a("v_lshrrev_b32 v3, 3, v4")
    a("v_lshl_add_u32 v13, v3, 7, v13")
    a("s_lshl_b32 s36, s3, 8")
    a(f"s_add_u32 s36, s36, {L_HL}")
    a("v_add_u32 v13, s36, v13")
    a("v_cmp_ne_u32 s[42:43], 0, v3")
    a("v_bfe_u32 v15, v1, 2, 1")
    a("v_lshrrev_b32 v3, 5, v1")
    a("v_lshl_add_u32 v15, v3, 4, v15")
    a("s_lshl_b32 s36, s3, 1")
    a("v_add_lshl_u32 v15, v15, s36, 14")
    a("v_and_b32 v3, 3, v1")
    a("v_lshl_add_u32 v15, v3, 5, v15")
    a("v_and_b32 v3, 1, v5")
    a("v_lshl_add_u32 v15, v3, 4, v15")
    a("s_lshl_b32 s36, s35, 7")
    a(f"s_add_u32 s36, s36, {YBUF}")
    a("v_add_u32 v15, s36, v15")
    a("s_mov_b32 s36, 0x3d372713")
    a("s_waitcnt vmcnt(0)")
    B1F = KV
    for par in range(2):
        sel = "s40" if par == 0 else "s41"
        for i in range(4):
            a(f"v_perm_b32 v{B1F+par*4+i}, v{W1+2*i+1}, v{W1+2*i}, {sel}")
    W2P = FR
    for u in range(4):
        for par in range(2):
            sel = "s40" if par == 0 else "s41"
            a(f"v_perm_b32 v{W2P+2*u+par}, v{W2+4+u}, v{W2+u}, {sel}")
    a(f"v_lshlrev_b32 v{B1}, 16, v{B1}")
    stamp(11)
    a("s_barrier")
    stamp(12)
    HF = T
    a(f"ds_read_b128 v[{HF}:{HF+3}], v12 offset:{L_HN}")
    HA = T + 8
    a("s_waitcnt lgkmcnt(0)")
    for par in range(2):
        a(f"v_mfma_f32_16x16x32_bf16 v[{HA+4*par}:{HA+4*par+3}], v[{HF}:{HF+3}], v[{B1F+par*4}:{B1F+par*4+3}], 0")
    for par in range(2):
        for b in range(2):
            a(f"v_cndmask_b32 v{HA+4*par+b}, v{HA+4*par+b}, v{HA+4*par+2+b}, s[42:43]")
    a("s_mov_b64 exec, 0xffff")
    a(f"ds_write2_b32 v13, v{HA}, v{HA+4} offset0:0 offset1:1")
    a(f"ds_write2_b32 v13, v{HA+1}, v{HA+5} offset0:16 offset1:17")
    a("s_mov_b64 exec, -1")
    a("s_waitcnt lgkmcnt(0)")
    a("s_barrier")
    for i in range(4):
        a(f"ds_read2_b32 v[{T+2*i}:{T+2*i+1}], v14 offset0:{64*i} offset1:{64*i+32}")
    a("s_waitcnt lgkmcnt(2)")
    a(f"v_pk_add_f32 v[{T}:{T+1}], v[{T}:{T+1}], v[{T+2}:{T+3}]")
    a("s_waitcnt lgkmcnt(0)")
    a(f"v_pk_add_f32 v[{T+4}:{T+5}], v[{T+4}:{T+5}], v[{T+6}:{T+7}]")
    a(f"v_pk_add_f32 v[{T}:{T+1}], v[{T}:{T+1}], v[{T+4}:{T+5}]")
    H = T + 16
    a(f"v_add_f32 v{H}, v{T}, v{T+1}")
    a(f"v_add_f32_dpp v{H}, v{H}, v{H} quad_perm:[1,0,3,2] {DPPM}")
    a(f"v_cvt_pk_bf16_f32 v{H}, v{H}, v{H}")
    a(f"v_lshlrev_b32 v{H}, 16, v{H}")
    a(f"v_add_f32 v{H}, v{H}, v{B1}")
    a(f"v_cvt_pk_bf16_f32 v{H}, v{H}, v{H}")
    a(f"v_lshlrev_b32 v{H}, 16, v{H}")
    t1, t2 = T + 17, T + 18
    a(f"v_mul_f32 v{t1}, v{H}, v{H}")
    a(f"v_fma_f32 v{t1}, v{t1}, s36, 1.0")
    a(f"v_mul_f32 v{t1}, v{t1}, v{H}")
    a(f"v_mul_f32 v{t1}, 0xc0135761, v{t1}")
    a(f"v_exp_f32 v{t1}, v{t1}")
    a(f"v_add_f32 v{t1}, 1.0, v{t1}")
    a(f"v_rcp_f32 v{t2}, v{t1}")
    a(f"v_mul_f32 v{H}, v{H}, v{t2}")
    a(f"v_mov_b32_dpp v{t1}, v{H} quad_perm:[2,3,0,1] {DPPM}")
    a(f"v_cvt_pk_bf16_f32 v{t2}, v{H}, v{t1}")
    GP = T + 20
    a(f"v_mov_b32_dpp v{t1}, v{t2} quad_perm:[0,0,0,0] {DPPM}")
    a(f"v_mov_b32 v{GP}, v{t1}")
    a(f"v_mov_b32 v{GP+1}, v{t1}")
    a(f"v_mov_b32_dpp v{GP}, v{t1} row_shr:4 row_mask:0xf bank_mask:0xa")
    a(f"v_mov_b32_dpp v{GP+1}, v{t1} row_shl:4 row_mask:0xf bank_mask:0x5")
    for b in range(2):
        for c in range(8):
            a(f"v_dot2_f32_bf16 v{AC+b*8+c}, v{W2P+c}, v{GP+b}, 0")
    red16((8,))
    a("s_mov_b32 exec_lo, 0x00ff00ff")
    a("s_mov_b32 exec_hi, 0x00ff00ff")
    a(f"global_store_dwordx4 v15, v[{AC}:{AC+3}], s[28:29] sc1")
    a("s_mov_b64 exec, -1")
    stamp(13)
    a.label("L_data_end")
    stamp_dump(14)
    a("s_endpgm")

    a.label("L_comm")
    a("s_setprio 3")
    a("s_mov_b32 s3, 8")
    if ipf:
        a("s_getpc_b64 s[64:65]")
        a.raw("L_pc:")
        a(f"s_sub_u32 s64, s64, (L_pc - {NAME}_kernel)")
        a("s_subb_u32 s65, s65, 0")
        if ipf == 1:
            a("s_min_u32 s36, s31, 18")
            a("s_lshl_b32 s36, s36, 9")
            a("v_add_u32 v6, s36, v2")
            a("s_mov_b32 exec_hi, 0")
            a("global_load_dwordx4 v[80:83], v6, s[64:65]")
            a("s_mov_b32 exec_hi, -1")
        else:
            for i in range(9):
                a(f"v_add_u32 v6, {1024*i}, v2")
                a(f"global_load_dwordx4 v[80:83], v6, s[64:65]")
    for i in range(4):
        a(f"v_mov_b32 v{28+i}, 0")
    a(f"ds_write_b128 v28, v[28:31] offset:{L_SY}")
    a(f"ds_write_b128 v28, v[28:31] offset:{L_SY+16}")
    a(f"ds_write_b128 v28, v[28:31] offset:{L_SY+32}")
    a("v_lshlrev_b32 v9, 5, v1")
    a("v_and_b32 v3, 3, v1")
    a("v_and_b32 v7, 7, v1")
    a("s_waitcnt lgkmcnt(0)")
    H0 = 24
    a(f"global_load_dwordx4 v[{H0}:{H0+3}], v9, s[4:5]")
    a(f"global_load_dwordx4 v[{H0+4}:{H0+7}], v9, s[4:5] offset:16")
    a("s_load_dwordx2 s[60:61], s[28:29], 0")
    a("s_lshl_b32 s36, s30, 1")
    a("s_add_u32 s36, s36, s32")
    a("s_lshl_b32 s36, s36, 4")
    a("s_add_u32 s36, s36, s33")
    a("s_lshl_b32 s36, s36, 7")
    a(f"s_add_u32 s36, s36, {MLBUF}")
    a("v_add_u32 v6, s36, v2")
    a("v_lshlrev_b32 v17, 3, v1")
    a("v_add_u32 v17, s36, v17")
    a("s_mov_b64 exec, 3")
    a("global_store_dwordx4 v6, v[12:15], s[28:29] sc1")
    a("s_mov_b64 exec, -1")
    a("s_mov_b32 s39, s57")
    a("v_lshrrev_b32 v18, 3, v1")
    a("v_lshlrev_b32 v18, 12, v18")
    a("v_lshl_add_u32 v18, v7, 3, v18")
    a("s_lshl_b32 s36, s39, 7")
    a("v_add_u32 v19, s36, v18")
    a(f"v_add_u32 v18, {HBUF}, v19")
    a(f"v_add_u32 v19, {FLAGS}, v19")
    a("s_cmp_eq_u32 s56, 0")
    a("s_cbranch_scc1 L_nohclr")
    a("s_mov_b32 exec_lo, 0x55555555")
    a("s_mov_b32 exec_hi, 0x55555555")
    a("global_store_dwordx4 v18, v[12:15], s[28:29] sc1")
    a("s_mov_b64 exec, -1")
    a("s_lshl_b32 s36, s39, 5")
    a("v_lshl_add_u32 v6, v7, 2, v5")
    a("v_add_lshl_u32 v8, v6, s36, 1")
    a("global_load_ushort v20, v8, s[4:5]")
    a("s_and_b32 s36, s36, 511")
    a("v_add_lshl_u32 v8, v6, s36, 1")
    a("global_load_ushort v21, v8, s[22:23]")
    a.label("L_nohclr")
    a("s_barrier")
    a("s_mov_b32 s36, 0x3f803f80")
    a("s_waitcnt vmcnt(0) lgkmcnt(0)")
    layernorm(H0, True)
    a(f"ds_write_b128 v9, v[{H0}:{H0+3}] offset:{L_HN}")
    a(f"ds_write_b128 v9, v[{H0+4}:{H0+7}] offset:{L_HN+16}")
    lds_inc(SY_XN)
    stamp(1)
    a("s_add_u32 s60, s60, 1")
    a("s_addc_u32 s61, s61, 0")
    a("v_mov_b32 v26, s60")
    a("v_mov_b32 v27, s61")
    a("v_lshlrev_b32 v20, 16, v20")
    a("v_lshlrev_b32 v21, 16, v21")
    a("s_lshl_b32 s36, s30, 15")
    a("s_lshl_b32 s37, s31, 9")
    a("s_add_u32 s36, s36, s37")
    a(f"s_add_u32 s36, s36, {QBUF}")
    a("v_lshrrev_b32 v12, 5, v1")
    a("v_lshlrev_b32 v12, 14, v12")
    a("v_and_b32 v6, 31, v1")
    a("v_lshl_add_u32 v12, v6, 4, v12")
    a("v_add_u32 v12, s36, v12")
    a("v_lshlrev_b32 v15, 7, v6")
    a("s_lshl_b32 s38, s30, 12")
    a(f"s_add_u32 s38, s38, {FLAGS}")
    a("v_add_u32 v15, s38, v15")
    a("v_lshlrev_b32 v6, 3, v1")
    a("s_lshl_b32 s38, s30, 15")
    a("s_lshl_b32 s37, s32, 14")
    a("s_add_u32 s38, s38, s37")
    a(f"s_add_u32 s38, s38, {QBUF}")
    a("v_add_u32 v28, s38, v2")
    a("v_add_u32 v29, 4096, v28")
    a("v_add_u32 v30, 8192, v28")
    a("v_add_u32 v31, 12288, v28")
    a("v_lshlrev_b32 v16, 2, v1")
    a("s_barrier")
    stamp(2)
    for w in range(8):
        a(f"ds_read_b64 v[{32+2*w}:{33+2*w}], v6 offset:{L_OL+512*w}")
    a("s_cmp_eq_u32 s56, 0")
    a("s_cbranch_scc1 L_noflag")
    a("s_mov_b32 exec_lo, 0x01010101")
    a("s_mov_b32 exec_hi, 0x01010101")
    a("global_store_dwordx2 v19, v[26:27], s[28:29] sc1")
    a("s_mov_b64 exec, -1")
    a.label("L_noflag")
    a("s_waitcnt lgkmcnt(0)")
    for w in range(4):
        a(f"v_pk_add_f32 v[{32+4*w}:{33+4*w}], v[{32+4*w}:{33+4*w}], v[{34+4*w}:{35+4*w}]")
    a("v_pk_add_f32 v[32:33], v[32:33], v[36:37]")
    a("v_pk_add_f32 v[40:41], v[40:41], v[44:45]")
    a("v_pk_add_f32 v[24:25], v[32:33], v[40:41]")
    a("global_store_dwordx4 v12, v[24:27], s[28:29] sc1")
    lds_inc(SY_QP)
    stamp(3)

    def pipelined_poll(name, nset, nload, issue, check, done, sl):
        for k in range(nset - 1):
            issue(k)
            if sl:
                a(f"s_sleep {sl}")
        a.label(name)
        for k in range(nset):
            issue((k + nset - 1) % nset)
            a(f"s_waitcnt vmcnt({nload*(nset-1)})")
            check(k)
            a(f"s_cbranch_vccz {name}_ok{k}")
            if sl:
                a(f"s_sleep {sl}")
        a("s_sub_u32 s62, s62, 1")
        a("s_cmp_gt_i32 s62, 0")
        a(f"s_cbranch_scc1 {name}")
        for k in range(nset):
            a.label(f"{name}_ok{k}")
            done(k)
            if k < nset - 1:
                a(f"s_branch {name}_done")
        a.label(f"{name}_done")

    def qissue(k):
        b = 32 + 64 * k
        for ks in range(4):
            for i in range(4):
                r = b + 16 * ks + 4 * i
                a(f"global_load_dwordx4 v[{r}:{r+3}], v{28+ks}, s[28:29] offset:{1024*i} sc1")

    def qcheck(k):
        b = 32 + 64 * k
        a(f"v_cmp_ne_u64 vcc, s[60:61], v[{b+2}:{b+3}]")
        for n in range(1, 16):
            a(f"v_cmp_ne_u64 s[{44+2*(n&3)}:{45+2*(n&3)}], s[60:61], v[{b+4*n+2}:{b+4*n+3}]")
            a(f"s_or_b64 vcc, vcc, s[{44+2*(n&3)}:{45+2*(n&3)}]")

    def qdone(k):
        b = 32 + 64 * k
        for i in range(4):
            r = b + 4 * i
            a(f"v_pk_add_f32 v[{r}:{r+1}], v[{r}:{r+1}], v[{r+16}:{r+17}]")
            a(f"v_pk_add_f32 v[{r+32}:{r+33}], v[{r+32}:{r+33}], v[{r+48}:{r+49}]")
        for i in range(4):
            r = b + 4 * i
            a(f"v_pk_add_f32 v[{r}:{r+1}], v[{r}:{r+1}], v[{r+32}:{r+33}]")
        for i in range(4):
            r = b + 4 * i
            a(f"v_cvt_pk_bf16_f32 v{r}, v{r}, v{r+1}")
        for i in range(4):
            r = b + 4 * i
            a(f"ds_write_b32 v16, v{r} offset:{L_Q+256*i}")

    lds_spin(SY_VI, VL, 24)
    qissue(0)
    lds_inc(SY_PI)
    a("s_waitcnt vmcnt(0)")
    qcheck(0)
    a("s_cbranch_vccz L_poll_q_ok0")
    pipelined_poll("L_poll_q", 1, 16, qissue, qcheck, qdone, 0)
    lds_inc(SY_Q)
    stamp(4)
    a("v_lshlrev_b32 v13, 5, v3")
    a("s_barrier")
    a(f"ds_read_b128 v[32:35], v13 offset:{L_MX}")
    a(f"ds_read_b128 v[36:39], v13 offset:{L_MX+16}")
    a(f"ds_read_b128 v[40:43], v13 offset:{L_LS}")
    a(f"ds_read_b128 v[44:47], v13 offset:{L_LS+16}")
    a("s_waitcnt lgkmcnt(0)")
    a("v_max3_f32 v24, v32, v33, v34")
    a("v_max3_f32 v25, v35, v36, v37")
    a("v_max3_f32 v24, v24, v38, v39")
    a("v_max_f32 v24, v24, v25")
    a("v_min_u32 v24, -2, v24")
    a("v_pk_add_f32 v[40:41], v[40:41], v[42:43]")
    a("v_pk_add_f32 v[44:45], v[44:45], v[46:47]")
    a("v_pk_add_f32 v[40:41], v[40:41], v[44:45]")
    a("v_add_f32 v25, v40, v41")
    a("v_min_u32 v25, -2, v25")
    a("s_mov_b64 exec, 15")
    a("global_store_dwordx2 v17, v[24:25], s[28:29] sc1")
    a("s_mov_b64 exec, -1")
    stamp(6)
    a("s_cmp_eq_u32 s55, 2")
    a("s_cbranch_scc1 L_comm_end")
    a.label("L_poll_f")
    a("global_load_dwordx2 v[24:25], v15, s[28:29] sc1")
    a("s_waitcnt vmcnt(0)")
    a("v_cmp_ne_u64 vcc, s[60:61], v[24:25]")
    poll_end("L_poll_f")
    lds_inc(SY_O)
    stamp(5)
    a("s_cmp_eq_u32 s55, 1")
    a("s_cbranch_scc1 L_comm_mlp")
    a("s_cmp_eq_u32 s56, 0")
    a("s_cbranch_scc1 L_comm_end")
    a("s_lshl_b32 s37, s57, 6")
    a("v_lshlrev_b32 v19, 3, v7")
    a("v_add_u32 v19, s37, v19")
    a("v_lshl_add_u32 v14, v7, 2, v5")
    a("v_lshlrev_b32 v14, 2, v14")

    def gather(ldsoff, sy, n):
        lab = a.newlabel("Lg")
        a.label(lab)
        a(f"ds_read_b32 v28, v11 offset:{L_SY+sy}")
        for i in range(4):
            if 2 * i + 1 < n:
                a(f"ds_read2_b32 v[{32+2*i}:{33+2*i}], v14 offset0:{(ldsoff-L_OL)//4+64*i} offset1:{(ldsoff-L_OL)//4+64*i+32}".replace("v14", "v15"))
            else:
                a(f"ds_read_b32 v{32+2*i}, v15 offset:{(ldsoff-L_OL)+256*i}")
        a("s_waitcnt lgkmcnt(0)")
        a("v_readfirstlane_b32 s38, v28")
        a(f"s_cmp_lt_u32 s38, {n}")
        a(f"s_cbranch_scc1 {lab}")
        a("v_pk_add_f32 v[32:33], v[32:33], v[34:35]")
        if n == 8:
            a("v_pk_add_f32 v[36:37], v[36:37], v[38:39]")
        else:
            a("v_add_f32 v36, v36, v38")
        a("v_pk_add_f32 v[32:33], v[32:33], v[36:37]")
        a("v_add_f32 v24, v32, v33")

    def pk(d, s):
        a(f"v_pk_add_f32 v[{d}:{d+1}], v[{d}:{d+1}], v[{s}:{s+1}]")
        a(f"v_pk_add_f32 v[{d+2}:{d+3}], v[{d+2}:{d+3}], v[{s+2}:{s+3}]")

    def tree(base, n):
        idx = [base + 4 * i for i in range(n)]
        while len(idx) > 2:
            nxt = []
            for i in range(0, len(idx) - 1, 2):
                pk(idx[i], idx[i + 1])
                nxt.append(idx[i])
            if len(idx) % 2:
                nxt.append(idx[-1])
            idx = nxt
        a(f"v_pk_add_f32 v[24:25], v[{idx[0]}:{idx[0]+1}], v[{idx[1]}:{idx[1]+1}]")
        a(f"v_pk_add_f32 v[26:27], v[{idx[0]+2}:{idx[0]+3}], v[{idx[1]+2}:{idx[1]+3}]")

    def red_tail():
        a("v_permlane32_swap_b32 v24, v26")
        a("v_permlane32_swap_b32 v25, v27")
        a("v_pk_add_f32 v[24:25], v[24:25], v[26:27]")
        a("v_permlane16_swap_b32 v24, v25")
        a("v_add_f32 v24, v24, v25")
        a(f"v_add_f32_dpp v24, v24, v24 row_ror:8 {DPPM}")

    def pack_rows(src):
        a(f"v_mov_b32 v24, v{src}")
        a(f"v_mov_b32 v25, v{src}")
        a("v_permlane16_swap_b32 v24, v25")
        a("v_perm_b32 v24, v25, v24, s41")
        a("v_mov_b32 v25, v24")
        a("v_permlane32_swap_b32 v24, v25")

    def widen_pack():
        a(f"v_mov_b32_dpp v26, v24 quad_perm:[1,0,3,2] {DPPM}")
        a(f"v_mov_b32_dpp v27, v25 quad_perm:[1,0,3,2] {DPPM}")

    def mk(n, areg):
        def issue(k):
            b = 32 + 4 * n * k
            for i in range(n):
                a(f"global_load_dwordx4 v[{b+4*i}:{b+4*i+3}], v{areg+(i>>2)}, s[28:29] offset:{1024*(i&3)} sc1")

        def check(k):
            check_sentinel(32 + 4 * n * k, 4 * n, 28)

        def done(k):
            tree(32 + 4 * n * k, n)
        return issue, check, done

    a(f"v_add_u32 v15, {L_P}, v14")
    gather(L_OL, SY_R, 8)
    stamp(7)
    a("v_cvt_pk_bf16_f32 v24, v24, v24")
    a("v_lshlrev_b32 v24, 16, v24")
    a("v_add_f32 v24, v24, v20")
    a("v_cvt_pk_bf16_f32 v24, v24, v24")
    a("v_lshlrev_b32 v22, 16, v24")
    pack_rows(22)
    a("v_min_u32 v24, -2, v24")
    a("v_min_u32 v25, -2, v25")
    widen_pack()
    a("s_mov_b32 exec_lo, 0x55555555")
    a("s_mov_b32 exec_hi, 0x55555555")
    a("global_store_dwordx4 v18, v[24:27], s[28:29] sc1")
    a("s_mov_b64 exec, -1")
    stamp(8)
    a("s_cmp_lg_u32 s57, 0")
    a("s_cbranch_scc1 L_noepoch")
    a("v_mov_b32 v28, s60")
    a("v_mov_b32 v29, s61")
    a("s_mov_b64 exec, 1")
    a("global_store_dwordx2 v11, v[28:29], s[28:29] sc1")
    a("s_mov_b64 exec, -1")
    a.label("L_noepoch")
    if ysl:
        a(f"s_sleep {ysl}")
    lds_inc(SY_Y)
    a(f"v_add_u32 v15, {L_P+1024}, v14")
    gather(L_OL, SY_R2, 7)
    stamp(9)
    a("v_cvt_pk_bf16_f32 v24, v24, v24")
    a("v_lshlrev_b32 v24, 16, v24")
    a("v_add_f32 v24, v24, v21")
    a("v_cvt_pk_bf16_f32 v24, v24, v24")
    a("v_lshlrev_b32 v24, 16, v24")
    a("v_add_f32 v24, v24, v22")
    a("v_cvt_pk_bf16_f32 v24, v24, v24")
    a("v_lshlrev_b32 v23, 16, v24")
    pack_rows(23)
    widen_pack()
    a("s_mov_b64 exec, 0x55")
    a("global_store_dwordx4 v19, v[24:27], s[24:25]")
    a("s_mov_b64 exec, -1")
    stamp(10)
    a("s_branch L_comm_end")
    a.label("L_comm_mlp")
    a("v_lshrrev_b32 v12, 1, v1")
    a("v_lshlrev_b32 v12, 7, v12")
    a("v_and_b32 v14, 1, v1")
    a("v_lshl_add_u32 v12, v14, 5, v12")
    a("s_lshl_b32 s36, s30, 12")
    a(f"s_add_u32 s36, s36, {HBUF}")
    a("v_add_u32 v12, s36, v12")
    a("s_mov_b32 s36, 0x3f803f80")
    a.label("L_poll_h")
    a(f"global_load_dwordx4 v[{H0}:{H0+3}], v12, s[28:29] sc1")
    a(f"global_load_dwordx4 v[{H0+4}:{H0+7}], v12, s[28:29] offset:16 sc1")
    a("s_waitcnt vmcnt(0)")
    check_sentinel(H0, 8, 40)
    poll_end("L_poll_h")
    stamp(7)
    layernorm(H0, False)
    a(f"ds_write_b128 v9, v[{H0}:{H0+3}] offset:{L_HN}")
    a(f"ds_write_b128 v9, v[{H0+4}:{H0+7}] offset:{L_HN+16}")
    a("s_waitcnt lgkmcnt(0)")
    a("s_barrier")
    stamp(8)
    a.label("L_comm_end")
    stamp_dump(14)
    a.label("L_end")
    a("s_endpgm")

    R('.section .rodata,"a"')
    R(".p2align 6")
    R(f".amdhsa_kernel {NAME}_kernel")
    R("  .amdhsa_next_free_vgpr 168")
    R("  .amdhsa_next_free_sgpr 102")
    R("  .amdhsa_accum_offset 168")
    R("  .amdhsa_group_segment_fixed_size 0")
    R("  .amdhsa_kernarg_size 104")
    R("  .amdhsa_user_sgpr_count 2")
    R("  .amdhsa_user_sgpr_kernarg_segment_ptr 1")
    R("  .amdhsa_system_sgpr_workgroup_id_x 1")
    R("  .amdhsa_float_denorm_mode_32 3")
    R(".end_amdhsa_kernel")
    return a.text()


if __name__ == "__main__":
    out = sys.argv[1] if len(sys.argv) > 1 else "k.s"
    kw = {}
    for arg in sys.argv[2:]:
        if arg == "stamps":
            kw["stamps"] = True
        else:
            k, v = arg.split("=")
            kw[k] = int(v)
    open(out, "w").write(gen(**kw))
```
